```python
import torch

def _softmax(x, axis=-1):
    return torch.softmax(x, dim=axis)
def _gelu(x):
    return torch.nn.functional.gelu(x, approximate="tanh")
def _silu(x):
    return torch.nn.functional.silu(x)
def _sigmoid(x):
    return torch.sigmoid(x)
def _layernorm(x, axis=-1, eps=1e-5):
    m = x.mean(dim=axis, keepdim=True)
    v = x.var(dim=axis, keepdim=True, unbiased=False)
    return (x - m) / torch.sqrt(v + eps)
def _scatter_add(tgt, idx, src, axis=0):
    return tgt.clone().index_add_(axis, idx, src)
def _segment_sum(src, seg, n):
    out = torch.zeros((n,) + src.shape[1:], dtype=src.dtype)
    return out.index_add_(0, seg, src)
def _pad(x, pw):
    flat = tuple(v for pair in reversed(pw) for v in pair)
    return torch.nn.functional.pad(x, flat)

kernel_name = 'standalone__softmax_full_causal__prompt'

def setup_inputs():

    _w = (lambda a: (lambda t: t.to(torch.bfloat16) if t.is_floating_point() else t)(torch.as_tensor(a)))
    B, H, S, D = 1, 32, 2048, 128
    return {
        "q": _w((lambda *s: torch.randn(*s, dtype=torch.bfloat16) * 0.8)(B, H, S, D)),
        "k": _w((lambda *s: torch.randn(*s, dtype=torch.bfloat16) * 0.8)(B, H, S, D)),
        "v": _w((lambda *s: torch.randn(*s, dtype=torch.bfloat16) * 0.05)(B, H, S, D)),
    }

def reference(q, k, v):
    B, H, S, D = q.shape[0], q.shape[1], q.shape[2], q.shape[3]
    scale = D ** -0.5
    scores = torch.einsum('bhqd,bhkd->bhqk', q, k) * scale
    qi = torch.reshape(torch.arange(S), (1, 1, S, 1))
    kj = torch.reshape(torch.arange(S), (1, 1, 1, S))
    causal_bias = (lambda x, dt: x.to(dt))(kj > qi, scores.dtype) * (-1e9)
    attn = _softmax(scores + causal_bias, axis=-1)
    return torch.einsum('bhqk,bhkd->bhqd', attn, v)
```

```python
import sys

NAME = "standalone__softmax_full_causal__prompt"
OUT = sys.argv[1] if len(sys.argv) > 1 else f"cdna_kernels/{NAME}.s"

KP = 1040
VP = 1088
KSLOT = 16 * KP
VSLOT = 16 * VP
NKS = 4
NVS = 4
KRING = NKS * KSLOT
LDS_BYTES = KRING + NVS * VSLOT

vO = 0
vQ = 64
vS = [96, 112]
vP = [128, 136]
vNM = 144
vKf = 160
vVf = 192
vE = 224
vLs = [228, 229]
vL = 230
vKaddr = 231
vVaddr = 232
vKbase = 233
vVbase = 234
vQoff = 235
vDma = 236
vQm = 237
vT0 = 238
vT1 = 239
vT2 = 240
vT3 = 241
NVGPR = 244

sQ = 12
sK = 16
sV = 20
sO = 24
sW = 28
sHead = 29
sI = 30
sN = 31
sRem = 32
sIsA = 33
sT = 34
sBar = 35
sKg = 36
sVg = 37
sKm = 38
sVm = 39
sKr = 40
sVr = 41
sC = 42
sThr = 43
sBig = 44
sTmp = 45
sTmp2 = 46
sKw = 47
sVw = 48
sMask = 50

lines = []
def emit(s):
    lines.append("    " + s)
def label(s):
    lines.append(s + ":")
def comment(s):
    lines.append("    ; " + s)

def vr(b, n):
    return f"v[{b}:{b+n-1}]"

def mfma(d, a, b, c):
    return f"v_mfma_f32_32x32x16_bf16 {vr(d,16)}, {vr(a,4)}, {vr(b,4)}, {vr(c,16)}"

def op(t, c=4, k="valu", **kw):
    d = dict(t=t, c=c, k=k)
    d.update(kw)
    return d

def sm_stream(p, pairs, first):
    S = vS[p]; P = vP[p]; L = vLs[p]
    def E(e): return op(f"v_exp_f32 v{vE + e % 4}, v{S + e}", 8, "exp")
    def A(e): return op(f"v_add_f32 v{L}, v{L}, v{vE + e % 4}")
    def A01(): return op(f"v_add_f32 v{L}, v{vE}, v{vE + 1}")
    def C(k): return op(f"v_cvt_pk_bf16_f32 v{P + k}, v{vE + (2*k) % 4}, v{vE + (2*k+1) % 4}", 4, "cvt", preg=k)
    ops = []
    k0 = pairs[0]
    ops.append(E(2*k0)); ops.append(E(2*k0+1))
    for idx, k in enumerate(pairs):
        nxt = pairs[idx+1] if idx + 1 < len(pairs) else None
        if nxt is not None:
            ops.append(E(2*nxt))
        else:
            ops.append(op("s_nop 0", 4, "nop"))
        if k == 0:
            ops.append(A01())
        else:
            ops.append(A(2*k)); ops.append(A(2*k+1))
        ops.append(C(k))
        if nxt is not None:
            ops.append(E(2*nxt+1))
    return ops

SM1_PAIRS = [0, 1, 2]
SM2_PAIRS = [3, 4, 5, 6, 7]

def kread(s, blk, dst=None):
    d = (vKf if dst is None else dst) + 4*s
    return op(f"ds_read_b128 {vr(d,4)}, v{vKaddr} offset:{blk*512 + s*32}", 4, "lds", frag=("K", s))

def vread(f, blk, second):
    st, db = f // 4, f % 4
    d = vVf + 4*f + 2*second
    off = second * 8 * VP + (2*blk + st) * 256 + db * 64
    return op(f"ds_read_b64_tr_b16 {vr(d,2)}, v{vVaddr} offset:{off}", 4, "lds", frag=("V", f))

def dma_group(kind):
    o = []
    if kind == "K":
        srd, g, m, w, step = sK, sKg, sKm, sKw, KP - 256
    else:
        srd, g, m, w, step = sV, sVg, sVm, sVw, VP - 256
    o.append(f"s_add_u32 m0, s{m}, s{w}")
    for pp in range(4):
        o.append("s_nop 0")
        o.append(f"buffer_load_dwordx4 v{vDma}, s[{srd}:{srd+3}], s{g} offen offset:{pp*256} lds")
        if pp < 3:
            o.append(f"s_add_u32 m0, m0, {step}")
    o.append(f"s_add_u32 s{g}, s{g}, 16384")
    if kind == "K":
        o.append(f"s_add_u32 s{m}, s{m}, {KSLOT}")
        o.append(f"s_cmp_ge_u32 s{m}, {KRING}")
        o.append(f"s_cselect_b32 s{m}, 0, s{m}")
    else:
        o.append(f"s_add_u32 s{m}, s{m}, {VSLOT}")
        o.append(f"s_cmp_ge_u32 s{m}, {KRING + NVS*VSLOT}")
        o.append(f"s_cselect_b32 s{m}, {KRING}, s{m}")
    return o

uid = [0]
def newlabel(p):
    uid[0] += 1
    return f"L_{p}_{uid[0]}"

def duty(cond):
    o = []
    lskip = newlabel("skipbar"); lnodma = newlabel("nodma")
    if cond:
        o.append(f"s_cmp_ge_u32 s{sBar}, s{sT}")
        o.append(f"s_cbranch_scc1 {lskip}")
    o.append("s_waitcnt vmcnt(8)")
    o.append("s_barrier")
    o.append(f"s_add_u32 s{sBar}, s{sBar}, 1")
    o.append(f"s_cmp_eq_u32 s{sIsA}, 0")
    o.append(f"s_cbranch_scc1 {lnodma}")
    o += dma_group("K")
    o += dma_group("V")
    o.append(f"{lnodma}:")
    if cond:
        o.append(f"{lskip}:")
    o.append(f"s_add_u32 s{sKr}, s{sKr}, {KSLOT}")
    o.append(f"s_cmp_ge_u32 s{sKr}, {KRING}")
    o.append(f"s_cselect_b32 s{sKr}, 0, s{sKr}")
    o.append(f"s_add_u32 s{sVr}, s{sVr}, {VSLOT}")
    o.append(f"s_cmp_ge_u32 s{sVr}, {NVS*VSLOT}")
    o.append(f"s_cselect_b32 s{sVr}, 0, s{sVr}")
    o.append(f"v_add_u32 v{vKaddr}, s{sKr}, v{vKbase}")
    o.append(f"v_add_u32 v{vVaddr}, s{sVr}, v{vVbase}")
    return o

rare_blocks = []

def rare_block(p, has_next):
    lab = newlabel("rare"); ret = newlabel("rareret")
    c = 1 - p
    o = []
    o.append(f"{lab}:")
    o.append("s_nop 7"); o.append("s_nop 7")
    S = vS[c]
    o.append(f"v_max3_f32 v{vT0}, v{S}, v{S+1}, v{S+2}")
    for r in range(3, 15, 2):
        o.append(f"v_max3_f32 v{vT0}, v{vT0}, v{S+r}, v{S+r+1}")
    o.append(f"v_max_f32 v{vT0}, v{vT0}, v{S+15}")
    o.append(f"v_mov_b32 v{vT1}, v{vT0}")
    o.append("s_nop 1")
    o.append(f"v_permlane32_swap_b32 v{vT0}, v{vT1}")
    o.append("s_nop 1")
    o.append(f"v_max_f32 v{vT0}, v{vT0}, v{vT1}")
    o.append(f"v_ceil_f32 v{vT0}, v{vT0}")
    o.append(f"v_max_f32 v{vT0}, 0, v{vT0}")
    o.append(f"v_exp_f32 v{vT1}, -v{vT0}")
    for r in range(16):
        o.append(f"v_sub_f32 v{vNM+r}, v{vNM+r}, v{vT0}")
    for r in range(16):
        o.append(f"v_sub_f32 v{S+r}, v{S+r}, v{vT0}")
    if has_next:
        for r in range(16):
            o.append(f"v_sub_f32 v{vS[p]+r}, v{vS[p]+r}, v{vT0}")
    for r in range(64):
        o.append(f"v_mul_f32 v{vO+r}, v{vO+r}, v{vT1}")
    o.append(f"v_mul_f32 v{vL}, v{vL}, v{vT1}")
    for x in sm_stream(c, list(range(8)), True):
        o.append(x["t"])
    if has_next:
        for x in sm_stream(p, SM1_PAIRS, True):
            o.append(x["t"])
    o.append("s_nop 1")
    o.append(f"s_branch {ret}")
    rare_blocks.append(o)
    return lab, ret

def mask_snippet():
    o = []
    for r in range(16):
        kv = 8*(r//4) + r % 4
        o.append(f"v_cmp_gt_i32 s[{sMask+2*r}:{sMask+2*r+1}], {kv}, v{vQm}")
    o.append(f"v_mov_b32 v{vT0}, s{sBig}")
    o.append("s_nop 1")
    for r in range(16):
        o.append(f"v_cndmask_b32 v{vNM+r}, v{vNM+r}, v{vT0}, s[{sMask+2*r}:{sMask+2*r+1}]")
    o.append("s_nop 1")
    return o

BUDGET = 24

def half_iter(p, kind, prev_lds, cond_bar=False):
    has_qk = kind == "full"
    has_sm2 = kind in ("full", "tail1")
    has_sm1 = kind == "full"
    has_vnext = kind in ("full", "tail1")
    blk = p
    M = []
    if has_qk:
        for s in range(8):
            M.append(dict(t=mfma(vS[p], vKf + 4*s, vQ + 4*s, vNM if s == 0 else vS[p]), need=("K", s), idx=s))
    for st in range(2):
        for db in range(4):
            f = st*4 + db
            M.append(dict(t=mfma(vO + 16*db, vVf + 4*f, vP[p] + 4*st, vO + 16*db), need=("V", f), idx=8+f))
    nq = 8 if has_qk else 0
    streams = []
    vl = []
    for f in range(4, 8):
        for sec in range(2):
            o = vread(f, blk, sec); o["e"] = -1 if not has_qk else (f - 4); vl.append(o)
    streams.append(vl)
    if has_sm2:
        s2 = sm_stream(1 - p, SM2_PAIRS, False)
        for o in s2: o["e"] = -1 if not has_qk else 0
        streams.append(s2)
    if has_qk:
        kr = []
        for s in range(8):
            o = kread(s, 1 - p); o["e"] = nq + s; kr.append(o)
        streams.append(kr)
    if has_vnext:
        ve = []
        for f in range(4):
            for sec in range(2):
                o = vread(f, 1 - p, sec); o["e"] = nq + f + 1; ve.append(o)
        streams.append(ve)
    if has_sm1:
        s1 = sm_stream(p, SM1_PAIRS, True)
        for o in s1:
            o["e"] = nq + 2
            if o["k"] == "cvt": o["e"] = nq + 3
        streams.append(s1)
    ng = len(M)
    gaps = {g: [] for g in range(-1, ng)}
    pos = [0] * len(streams)
    total = sum(o["c"] for s in streams for o in s)
    for g in range(-1, ng):
        if g == -1 and has_qk:
            continue
        used = 0
        budget = BUDGET - (4 if (g + 1) % 4 == 0 else 0)
        if g == -1:
            budget = 32
        last = (g == ng - 1)
        progress = True
        while progress:
            progress = False
            for si, s in enumerate(streams):
                if pos[si] < len(s):
                    o = s[pos[si]]
                    if has_sm1 and s is streams[-1] and has_sm2 and pos[1] < len(streams[1]):
                        continue
                    if g == -1 and o["k"] != "lds":
                        continue
                    if o["e"] <= g and (used + o["c"] <= budget or last):
                        gaps[g].append(o); used += o["c"]; pos[si] += 1; progress = True
    for si, s in enumerate(streams):
        assert pos[si] == len(s), (kind, si, pos[si], len(s))
    seq = []
    for o in gaps[-1]:
        seq.append(("o", o))
    if p == 1 and not has_qk:
        seq.append(("duty", None))
    for g in range(ng):
        if p == 1 and has_qk and g == nq:
            seq.append(("duty", None))
        seq.append(("m", M[g]))
        for o in gaps[g]:
            seq.append(("o", o))
    out = []
    ldsq = list(prev_lds)
    mine = []
    waited_upto = -1
    since_qk = None
    for kind_, it in seq:
        if kind_ == "m":
            idx = it["idx"]
            if idx % 4 == 0:
                tag = it["need"][0]
                base = it["need"][1]
                needs = [(tag, base + q) for q in range(4)]
                lastpos = max(i for i, t in enumerate(ldsq) if t in needs)
                if lastpos > waited_upto:
                    n = len(ldsq) - 1 - lastpos
                    assert n <= 15, n
                    out.append(f"s_waitcnt lgkmcnt({n})")
                    waited_upto = lastpos
                    if since_qk is not None: since_qk += 1
            out.append(it["t"])
            if has_qk and idx == 7:
                since_qk = 0
            elif since_qk is not None:
                since_qk += 1
        elif kind_ == "o":
            if it["k"] == "lds":
                ldsq.append(it["frag"]); mine.append(it["frag"])
            if has_sm1 and it is streams[-1][0]:
                assert since_qk is not None
                if since_qk < 12:
                    out.append(f"s_nop {12 - since_qk - 1}")
            out.append(it["t"])
            if since_qk is not None: since_qk += 1
        else:
            d = duty(cond_bar)
            out += d
            if since_qk is not None: since_qk += 8
    if has_sm2:
        lab, ret = rare_block(p, has_sm1)
        out.append(f"v_cmp_lt_f32 vcc, s{sThr}, v{vLs[1-p]}")
        out.append(f"s_cbranch_vccnz {lab}")
        out.append(f"{ret}:")
        out.append(f"v_add_f32 v{vL}, v{vL}, v{vLs[1-p]}")
    costs = [sum(o["c"] for o in gaps[g]) for g in range(-1, ng)]
    return out, mine, costs

def emit_block(o):
    for s in o:
        if s.endswith(":"):
            lines.append(s)
        else:
            emit(s)

hdr = f"""; Kernarg layout for this problem (48 bytes, ptrs only, base s[0:1]):
; @launch grid=(256,1,1) block=(512,1,1) lds={LDS_BYTES}
.amdgcn_target "amdgcn-amd-amdhsa--gfx950"
.text
.globl {NAME}_kernel
.p2align 8
.type {NAME}_kernel,@function
{NAME}_kernel:"""
lines.append(hdr)

emit("s_cmp_ge_u32 s2, 256")
emit("s_cbranch_scc1 L_end")
emit("s_load_dwordx4 s[4:7], s[0:1], 0")
emit("s_load_dwordx4 s[8:11], s[0:1], 16")
emit(f"v_lshrrev_b32 v{vT0}, 6, v0")
emit(f"v_and_b32 v{vT1}, 63, v0")
emit(f"v_readfirstlane_b32 s{sW}, v{vT0}")
emit(f"s_and_b32 s{sHead}, s2, 7")
emit(f"s_lshl_b32 s{sHead}, s{sHead}, 2")
emit(f"s_lshr_b32 s{sTmp}, s2, 3")
emit(f"s_and_b32 s{sTmp}, s{sTmp}, 3")
emit(f"s_add_u32 s{sHead}, s{sHead}, s{sTmp}")
emit(f"s_lshr_b32 s{sI}, s2, 5")
emit(f"s_lshl_b32 s{sTmp}, s{sI}, 1")
emit(f"s_sub_u32 s{sT}, 32, s{sTmp}")
emit(f"s_lshl_b32 s{sTmp}, s{sI}, 2")
emit(f"s_add_u32 s{sN}, s{sTmp}, s{sW}")
emit(f"s_sub_u32 s{sTmp2}, 67, s{sTmp}")
emit(f"s_sub_u32 s{sTmp2}, s{sTmp2}, s{sW}")
emit(f"s_cmp_lt_u32 s{sW}, 4")
emit(f"s_cselect_b32 s{sIsA}, 1, 0")
emit(f"s_cselect_b32 s{sN}, s{sN}, s{sTmp2}")
emit(f"s_lshl_b32 s{sTmp}, s{sN}, 13")
emit(f"s_add_u32 s{sN}, s{sN}, 1")
emit(f"v_and_b32 v{vT2}, 31, v{vT1}")
emit(f"v_lshrrev_b32 v{vT3}, 5, v{vT1}")
emit(f"v_lshlrev_b32 v{vQoff}, 8, v{vT2}")
emit(f"v_lshl_add_u32 v{vQoff}, v{vT3}, 4, v{vQoff}")
emit(f"v_add_u32 v{vQoff}, s{sTmp}, v{vQoff}")
emit(f"v_lshlrev_b32 v{vQm}, 2, v{vT3}")
emit(f"v_sub_u32 v{vQm}, v{vT2}, v{vQm}")
emit(f"v_lshrrev_b32 v{vT0}, 4, v{vT1}")
emit(f"v_and_b32 v{vT2}, 15, v{vT1}")
emit(f"v_lshlrev_b32 v{vDma}, 12, v{vT0}")
emit(f"v_lshl_add_u32 v{vDma}, v{vT2}, 4, v{vDma}")
emit(f"s_and_b32 s{sTmp}, s{sW}, 3")
emit(f"s_lshl_b32 s{sTmp2}, s{sTmp}, 10")
emit(f"v_add_u32 v{vDma}, s{sTmp2}, v{vDma}")
emit(f"s_mul_i32 s{sKw}, s{sTmp}, {4*KP}")
emit(f"s_mul_i32 s{sVw}, s{sTmp}, {4*VP}")
emit(f"v_mul_u32_u24 v{vKbase}, {KP}, v{vT2}")
emit(f"v_and_b32 v{vT0}, 1, v{vT0}")
emit(f"v_lshl_add_u32 v{vKbase}, v{vT0}, 8, v{vKbase}")
emit(f"v_lshl_add_u32 v{vKbase}, v{vT3}, 4, v{vKbase}")
emit(f"v_lshrrev_b32 v{vT2}, 2, v{vT2}")
emit(f"v_lshl_add_u32 v{vT2}, v{vT3}, 2, v{vT2}")
emit(f"v_mul_u32_u24 v{vVbase}, {VP}, v{vT2}")
emit(f"v_lshl_add_u32 v{vVbase}, v{vT0}, 5, v{vVbase}")
emit(f"v_and_b32 v{vT2}, 3, v{vT1}")
emit(f"v_lshl_add_u32 v{vVbase}, v{vT2}, 3, v{vVbase}")
emit(f"v_add_u32 v{vVbase}, {KRING}, v{vVbase}")
emit(f"v_mov_b32 v{vKaddr}, v{vKbase}")
emit(f"v_mov_b32 v{vVaddr}, v{vVbase}")
import struct, math
def f32(x): return struct.unpack("<I", struct.pack("<f", x))[0]
emit(f"s_mov_b32 s{sC}, 0x{f32(math.log2(math.e) / math.sqrt(128.0)):08x}")
emit(f"s_mov_b32 s{sThr}, 0x{f32(65536.0):08x}")
emit(f"s_mov_b32 s{sBig}, 0x{f32(-1e30):08x}")
emit(f"s_mov_b32 s{sBar}, 0")
emit(f"s_mov_b32 s{sKg}, 0")
emit(f"s_mov_b32 s{sVg}, 0")
emit(f"s_mov_b32 s{sKm}, 0")
emit(f"s_mov_b32 s{sVm}, {KRING}")
emit(f"s_mov_b32 s{sKr}, 0")
emit(f"s_mov_b32 s{sVr}, {(NVS-1)*VSLOT}")
emit(f"s_lshl_b32 s{sTmp}, s{sHead}, 19")
emit(f"s_lshl_b32 s{sTmp2}, s{sT}, 14")
emit("s_waitcnt lgkmcnt(0)")
for srd, ptr, nrec in ((sQ, 4, None), (sK, 6, sTmp2), (sV, 8, sTmp2), (sO, 10, None)):
    emit(f"s_add_u32 s{srd}, s{ptr}, s{sTmp}")
    emit(f"s_addc_u32 s{srd+1}, s{ptr+1}, 0")
    emit(f"s_and_b32 s{srd+1}, s{srd+1}, 0xffff")
    if nrec is None:
        emit(f"s_mov_b32 s{srd+2}, 524288")
    else:
        emit(f"s_mov_b32 s{srd+2}, s{nrec}")
    emit(f"s_mov_b32 s{srd+3}, 0x00020000")

emit(f"s_cmp_eq_u32 s{sIsA}, 0")
emit("s_cbranch_scc1 L_proB")
emit_block(dma_group("K"))
for s in range(8):
    emit(f"buffer_load_dwordx4 {vr(vQ+4*s,4)}, v{vQoff}, s[{sQ}:{sQ+3}], 0 offen offset:{32*s}")
emit_block(dma_group("K"))
emit_block(dma_group("K"))
emit_block(dma_group("V"))
emit_block(dma_group("K"))
emit_block(dma_group("V"))
emit("s_branch L_proJ")
label("L_proB")
for s in range(8):
    emit(f"buffer_load_dwordx4 {vr(vQ+4*s,4)}, v{vQoff}, s[{sQ}:{sQ+3}], 0 offen offset:{32*s}")
label("L_proJ")
for r in range(64):
    emit(f"v_mov_b32 v{vO+r}, 0")
for r in range(16):
    emit(f"v_mov_b32 v{vNM+r}, 0")
emit(f"s_cmp_lg_u32 s{sN}, 1")
emit("s_cbranch_scc1 L_nomask0")
emit_block(mask_snippet())
label("L_nomask0")
emit(f"s_cmp_eq_u32 s{sIsA}, 0")
emit("s_cbranch_scc1 L_wqB")
emit("s_waitcnt vmcnt(20)")
emit("s_branch L_wqJ")
label("L_wqB")
emit("s_waitcnt vmcnt(0)")
label("L_wqJ")
emit(f"s_mov_b32 s{sTmp}, 0xffff0000")
for r in range(32):
    q = vQ + r
    emit(f"v_lshlrev_b32 v{vT0}, 16, v{q}")
    emit(f"v_and_b32 v{vT1}, s{sTmp}, v{q}")
    emit(f"v_mul_f32 v{vT0}, s{sC}, v{vT0}")
    emit(f"v_mul_f32 v{vT1}, s{sC}, v{vT1}")
    emit(f"v_cvt_pk_bf16_f32 v{q}, v{vT0}, v{vT1}")
emit("s_barrier")
for s in range(8):
    emit(kread(s, 0)["t"])
for s in range(8):
    emit(kread(s, 1, vVf)["t"])
emit("s_waitcnt lgkmcnt(8)")
for s in range(8):
    emit(mfma(vS[0], vKf + 4*s, vQ + 4*s, vNM if s == 0 else vS[0]))
emit("s_nop 7"); emit("s_nop 7")
S = vS[0]
emit(f"v_max3_f32 v{vT0}, v{S}, v{S+1}, v{S+2}")
for r in range(3, 15, 2):
    emit(f"v_max3_f32 v{vT0}, v{vT0}, v{S+r}, v{S+r+1}")
emit(f"v_max_f32 v{vT0}, v{vT0}, v{S+15}")
emit(f"v_mov_b32 v{vT1}, v{vT0}")
emit("s_nop 1")
emit(f"v_permlane32_swap_b32 v{vT0}, v{vT1}")
emit("s_nop 1")
emit(f"v_max_f32 v{vT0}, v{vT0}, v{vT1}")
for r in range(16):
    emit(f"v_sub_f32 v{vNM+r}, 0, v{vT0}")
for r in range(16):
    emit(f"v_sub_f32 v{S+r}, v{S+r}, v{vT0}")
emit(f"s_cmp_lg_u32 s{sN}, 2")
emit("s_cbranch_scc1 L_nomask1")
emit_block(mask_snippet())
label("L_nomask1")
emit("s_waitcnt lgkmcnt(0)")
for s in range(8):
    emit(mfma(vS[1], vVf + 4*s, vQ + 4*s, vNM if s == 0 else vS[1]))
for x in sm_stream(0, list(range(8)), True):
    emit(x["t"])
emit(f"v_mov_b32 v{vL}, v{vLs[0]}")
emit_block(duty(False))
for s in range(8):
    emit(kread(s, 0)["t"])
for f in range(4):
    for sec in range(2):
        emit(vread(f, 0, sec)["t"])
for x in sm_stream(1, SM1_PAIRS, True):
    emit(x["t"])
emit("s_waitcnt lgkmcnt(0)")
emit(f"s_cmp_eq_u32 s{sN}, 1")
emit("s_cbranch_scc1 L_tail2_0")
emit(f"s_cmp_eq_u32 s{sN}, 2")
emit("s_cbranch_scc1 L_tail1_0")
emit(f"s_cmp_eq_u32 s{sN}, 3")
emit("s_cbranch_scc1 L_chain0")
emit(f"s_sub_u32 s{sRem}, s{sN}, 4")

_, full_lds, _ = half_iter(0, "full", [("K", s) for s in range(8)] + [("V", f) for f in range(4)])
rare_blocks.clear(); uid[0] = 1000

label("L_loop0")
o, l0, c0 = half_iter(0, "full", full_lds)
emit_block(o)
emit(f"s_sub_u32 s{sRem}, s{sRem}, 1")
emit("s_cbranch_scc1 L_chain1")
label("L_loop1")
o, l1, c1 = half_iter(1, "full", full_lds)
emit_block(o)
emit(f"s_sub_u32 s{sRem}, s{sRem}, 1")
emit("s_cbranch_scc0 L_loop0")
print("gap costs p0", c0, file=sys.stderr)
print("gap costs p1", c1, file=sys.stderr)
assert l0 == full_lds and l1 == full_lds

for p in (0, 1):
    label(f"L_chain{p}")
    emit_block(mask_snippet())
    o, lf, _ = half_iter(p, "full", full_lds, cond_bar=True)
    emit_block(o)
    label(f"L_tail1_{1-p}")
    o, lt1, _ = half_iter(1 - p, "tail1", full_lds, cond_bar=True)
    emit_block(o)
    label(f"L_tail2_{p}")
    o, lt2, _ = half_iter(p, "tail2", lt1, cond_bar=True)
    emit_block(o)
    if p == 0:
        emit("s_branch L_epi")

label("L_epi")
emit(f"s_cmp_lg_u32 s{sIsA}, 0")
emit("s_cbranch_scc1 L_epi2")
label("L_bbar")
emit(f"s_cmp_ge_u32 s{sBar}, s{sT}")
emit("s_cbranch_scc1 L_epi2")
emit("s_barrier")
emit(f"s_add_u32 s{sBar}, s{sBar}, 1")
emit("s_branch L_bbar")
label("L_epi2")
emit(f"v_mov_b32 v{vT0}, v{vL}")
emit("s_nop 7")
emit(f"v_permlane32_swap_b32 v{vT0}, v{vL}")
emit("s_nop 7")
emit(f"v_add_f32 v{vL}, v{vL}, v{vT0}")
emit(f"v_rcp_f32 v{vT1}, v{vL}")
emit("s_nop 1")
for db in range(4):
    for k in range(2):
        b = vO + 16*db + 8*k
        stg = vKf + 4*(2*db + k)
        for r in range(8):
            emit(f"v_mul_f32 v{b+r}, v{b+r}, v{vT1}")
        for r in range(4):
            emit(f"v_cvt_pk_bf16_f32 v{stg+r}, v{b+2*r}, v{b+2*r+1}")
        emit("s_nop 1")
        emit(f"v_permlane32_swap_b32 v{stg}, v{stg+2}")
        emit(f"v_permlane32_swap_b32 v{stg+1}, v{stg+3}")
        emit("s_nop 1")
        emit(f"buffer_store_dwordx4 {vr(stg,4)}, v{vQoff}, s[{sO}:{sO+3}], 0 offen offset:{64*db + 32*k}")
emit(f"s_cmp_eq_u32 s{sIsA}, 0")
emit("s_cbranch_scc1 L_end")
label("L_load")
emit(f"s_cmp_ge_u32 s{sBar}, s{sT}")
emit("s_cbranch_scc1 L_loadend")
emit("s_waitcnt vmcnt(8)")
emit("s_barrier")
emit(f"s_add_u32 s{sBar}, s{sBar}, 1")
emit_block(dma_group("K"))
emit_block(dma_group("V"))
emit("s_branch L_load")
label("L_loadend")
emit("s_waitcnt vmcnt(0)")
label("L_end")
emit("s_endpgm")
for rb in rare_blocks:
    emit_block(rb)
emit("s_endpgm")

lines.append(f""".section .rodata,"a"
.p2align 6
.amdhsa_kernel {NAME}_kernel
  .amdhsa_next_free_vgpr 256
  .amdhsa_next_free_sgpr 102
  .amdhsa_accum_offset 256
  .amdhsa_group_segment_fixed_size 0
  .amdhsa_kernarg_size 48
  .amdhsa_user_sgpr_count 2
  .amdhsa_user_sgpr_kernarg_segment_ptr 1
  .amdhsa_system_sgpr_workgroup_id_x 1
.end_amdhsa_kernel""")

open(OUT, "w").write("\n".join(lines) + "\n")
print("wrote", OUT, len(lines), "lines", file=sys.stderr)
```

```python
import sys

NAME = "standalone__softmax_full_causal__prompt"
ARGS = [a for a in sys.argv[1:] if not a.startswith("--")]
OPTS = dict((a[2:].split("=") + ["1"])[:2] for a in sys.argv[1:] if a.startswith("--"))
OUT = ARGS[0] if ARGS else f"cdna_kernels/{NAME}.s"
DIAG = "diag" in OPTS

KP = 1040
VP = 1088
KSLOT = 16 * KP
VSLOT = 16 * VP
NKS = 4
NVS = 4
KRING = NKS * KSLOT
RINGS = KRING + NVS * VSLOT
QST = 8 * 1040
LDS_BYTES = RINGS + 2 * QST

vO = 0
vQ = 64
vS = [96, 112]
vP = [128, 136]
vNM = 144
vKf = 160
vVf = 192
vE = 224
vLs = [228, 229]
vL = 230
vKaddr = 231
vVaddr = 232
vKbase = 233
vVbase = 234
vQoff = 235
vDma = 236
vQm = 237
vT0 = 238
vT1 = 239
vT2 = 240
vT3 = 241
NVGPR = 244

sQ = 12
sK = 16
sV = 20
sO = 24
sW = 28
sHead = 29
sI = 30
sN = 31
sRem = 32
sIsA = 33
sT = 34
sBar = 35
sKg = 36
sVg = 37
sKm = 38
sVm = 39
sKr = 40
sVr = 41
sC = 42
sThr = 43
sBig = 44
sTmp = 45
sTmp2 = 46
sKw = 47
sVw = 48
sCr = 49
sMask = 50

lines = []
def emit(s):
    lines.append("    " + s)
def label(s):
    lines.append(s + ":")
def comment(s):
    lines.append("    ; " + s)

def stamp(k):
    if DIAG:
        emit("s_memtime s[82:83]")
        emit("s_waitcnt lgkmcnt(0)")
        emit(f"s_mov_b32 s{84+k}, s82")

def vr(b, n):
    return f"v[{b}:{b+n-1}]"

def mfma(d, a, b, c):
    return f"v_mfma_f32_32x32x16_bf16 {vr(d,16)}, {vr(a,4)}, {vr(b,4)}, {vr(c,16)}"

def op(t, c=4, k="valu", **kw):
    d = dict(t=t, c=c, k=k)
    d.update(kw)
    return d

def sm_stream(p, pairs, first):
    S = vS[p]; P = vP[p]; L = vLs[p]
    def E(e): return op(f"v_exp_f32 v{vE + e % 4}, v{S + e}", 8, "exp")
    def A(e): return op(f"v_add_f32 v{L}, v{L}, v{vE + e % 4}")
    def A01(): return op(f"v_add_f32 v{L}, v{vE}, v{vE + 1}")
    def C(k): return op(f"v_cvt_pk_bf16_f32 v{P + k}, v{vE + (2*k) % 4}, v{vE + (2*k+1) % 4}", 4, "cvt", preg=k)
    ops = []
    k0 = pairs[0]
    ops.append(E(2*k0)); ops.append(E(2*k0+1))
    for idx, k in enumerate(pairs):
        nxt = pairs[idx+1] if idx + 1 < len(pairs) else None
        if nxt is not None:
            ops.append(E(2*nxt))
        elif k == 0:
            ops.append(op("s_nop 0", 4, "nop"))
        if k == 0:
            ops.append(A01())
        else:
            ops.append(A(2*k)); ops.append(A(2*k+1))
        ops.append(C(k))
        if nxt is not None:
            ops.append(E(2*nxt+1))
    return ops

SM1_PAIRS = [0, 1, 2]
SM2_PAIRS = [3, 4, 5, 6, 7]

def kread(s, blk, dst=None):
    d = (vKf if dst is None else dst) + 4*s
    return op(f"ds_read_b128 {vr(d,4)}, v{vKaddr} offset:{blk*512 + s*32}", 4, "lds", frag=("K", s))

def vread(f, blk, second):
    st, db = f // 4, f % 4
    d = vVf + 4*f + 2*second
    off = second * 8 * VP + (2*blk + st) * 256 + db * 64
    return op(f"ds_read_b64_tr_b16 {vr(d,2)}, v{vVaddr} offset:{off}", 4, "lds", frag=("V", f))

def dma_group(kind, slot=None):
    o = []
    if kind == "K":
        srd, g, m, w, step = sK, sKg, sKm, sKw, KP - 256
        if slot is not None: o.append(f"s_mov_b32 s{m}, {slot*KSLOT}")
    else:
        srd, g, m, w, step = sV, sVg, sVm, sVw, VP - 256
        if slot is not None: o.append(f"s_mov_b32 s{m}, {KRING + slot*VSLOT}")
    o.append(f"s_add_u32 m0, s{m}, s{w}")
    for pp in range(4):
        o.append("s_nop 0")
        o.append(f"buffer_load_dwordx4 v{vDma}, s[{srd}:{srd+3}], s{g} offen offset:{pp*256} lds")
        if pp < 3:
            o.append(f"s_add_u32 m0, m0, {step}")
    o.append(f"s_add_u32 s{g}, s{g}, 16384")
    return o

def ring_ops():
    cnt = [f"s_add_u32 s{sCr}, s{sCr}, 1", f"s_and_b32 s{sCr}, s{sCr}, 3"]
    dma = [f"s_add_u32 s{sKm}, s{sCr}, 3", f"s_and_b32 s{sKm}, s{sKm}, 3", f"s_mul_i32 s{sKm}, s{sKm}, {KSLOT}",
           f"s_xor_b32 s{sVm}, s{sCr}, 2", f"s_mul_i32 s{sVm}, s{sVm}, {VSLOT}", f"s_add_u32 s{sVm}, s{sVm}, {KRING}"]
    ka = [f"s_add_u32 s{sKr}, s{sCr}, 1", f"s_and_b32 s{sKr}, s{sKr}, 3", f"s_mul_i32 s{sKr}, s{sKr}, {KSLOT}",
          f"v_add_u32 v{vKaddr}, s{sKr}, v{vKbase}"]
    va = [f"s_mul_i32 s{sVr}, s{sCr}, {VSLOT}", f"v_add_u32 v{vVaddr}, s{sVr}, v{vVbase}"]
    return cnt, dma, ka, va

uid = [0]
def newlabel(p):
    uid[0] += 1
    return f"L_{p}_{uid[0]}"

def duty(cond):
    o = []
    lnodma = newlabel("nodma")
    cnt, dma, ka, va = ring_ops()
    o += cnt
    o.append("s_waitcnt vmcnt(8)")
    o.append("s_barrier")
    o.append(f"s_add_u32 s{sBar}, s{sBar}, 1")
    o.append(f"s_cmp_eq_u32 s{sIsA}, 0")
    o.append(f"s_cbranch_scc1 {lnodma}")
    o += dma
    o += dma_group("K")
    o += dma_group("V")
    o.append(f"{lnodma}:")
    o += ka + va
    return o

rare_blocks = []

def rare_block(p, has_next, replay=None):
    lab = newlabel("rare"); ret = newlabel("rareret")
    c = 1 - p
    o = []
    o.append(f"{lab}:")
    o.append("s_nop 7"); o.append("s_nop 7")
    S = vS[c]
    o.append(f"v_max3_f32 v{vT0}, v{S}, v{S+1}, v{S+2}")
    for r in range(3, 15, 2):
        o.append(f"v_max3_f32 v{vT0}, v{vT0}, v{S+r}, v{S+r+1}")
    o.append(f"v_max_f32 v{vT0}, v{vT0}, v{S+15}")
    o.append(f"v_mov_b32 v{vT1}, v{vT0}")
    o.append("s_nop 1")
    o.append(f"v_permlane32_swap_b32 v{vT0}, v{vT1}")
    o.append("s_nop 1")
    o.append(f"v_max_f32 v{vT0}, v{vT0}, v{vT1}")
    o.append(f"v_ceil_f32 v{vT0}, v{vT0}")
    o.append(f"v_max_f32 v{vT0}, 0, v{vT0}")
    o.append(f"v_exp_f32 v{vT1}, -v{vT0}")
    for r in range(16):
        o.append(f"v_sub_f32 v{vNM+r}, v{vNM+r}, v{vT0}")
    for r in range(16):
        o.append(f"v_sub_f32 v{S+r}, v{S+r}, v{vT0}")
    if has_next:
        for r in range(16):
            o.append(f"v_sub_f32 v{vS[p]+r}, v{vS[p]+r}, v{vT0}")
    for r in range(64):
        o.append(f"v_mul_f32 v{vO+r}, v{vO+r}, v{vT1}")
    o.append(f"v_mul_f32 v{vL}, v{vL}, v{vT1}")
    for x in sm_stream(c, list(range(8)), True):
        o.append(x["t"])
    if has_next:
        for t in replay:
            o.append(t)
    o.append("s_nop 1")
    o.append(f"s_branch {ret}")
    rare_blocks.append(o)
    return lab, ret

def mask_snippet():
    o = []
    for r in range(16):
        kv = 8*(r//4) + r % 4
        o.append(f"v_cmp_gt_i32 s[{sMask+2*r}:{sMask+2*r+1}], {kv}, v{vQm}")
    o.append(f"v_mov_b32 v{vT0}, s{sBig}")
    o.append("s_nop 1")
    for r in range(16):
        o.append(f"v_cndmask_b32 v{vNM+r}, v{vNM+r}, v{vT0}, s[{sMask+2*r}:{sMask+2*r+1}]")
    o.append("s_nop 1")
    return o

BUDGET = 24
BARGAP = int(OPTS.get('bargap', 7))
BUDGET_A = int(OPTS.get('ba', 30))

def half_iter(p, kind, prev_lds, role, cond_bar=False, loopctl=None):
    has_qk = kind == "full"
    has_sm2 = kind in ("full", "tail1")
    has_sm1 = kind == "full"
    has_vnext = kind in ("full", "tail1")
    blk = p
    M = []
    if has_qk:
        for s in range(8):
            M.append(dict(t=mfma(vS[p], vKf + 4*s, vQ + 4*s, vNM if s == 0 else vS[p]), idx=s))
    for st in range(2):
        for db in range(4):
            f = st*4 + db
            M.append(dict(t=mfma(vO + 16*db, vVf + 4*f, vP[p] + 4*st, vO + 16*db), idx=8+f))
    ng = len(M)
    nq = 8 if has_qk else 0
    mem = {g: [] for g in range(-1, ng)}
    pin = {g: [] for g in range(-1, ng)}
    first = {g: [] for g in range(-1, ng)}
    vl = [vread(f, blk, sec) for f in range(4, 8) for sec in range(2)]
    if has_qk:
        for i, o in enumerate(vl): mem[i // 2].append(o)
        for s in range(8): mem[8 + s // 2].append(kread(s, 1 - p))
        for f in range(4):
            for sec in range(2): mem[12 + f].append(vread(f, 1 - p, sec))
    else:
        for o in vl: mem[-1].append(o)
        if has_vnext:
            for f in range(4):
                for sec in range(2): mem[4 + f].append(vread(f, 1 - p, sec))
    ctl = []
    if p == 1:
        bar = []
        lskip = newlabel("skipbar")
        if cond_bar and role == "B":
            bar.append(f"s_cmp_ge_u32 s{sBar}, s{sT}")
            bar.append(f"s_cbranch_scc1 {lskip}")
        if role == "A":
            bar.append("s_waitcnt vmcnt(8)")
        if "x_bartime" in OPTS:
            bar += ["s_memtime s[82:83]", "s_waitcnt lgkmcnt(0)", "s_sub_u32 s93, s93, s82"]
        if "x_bartime2" in OPTS:
            bar += ["s_memtime s[82:83]", "s_waitcnt lgkmcnt(0)", "s_sub_u32 s93, s93, s82", "s_memtime s[82:83]", "s_waitcnt lgkmcnt(0)", "s_add_u32 s93, s93, s82"]
        bar.append("s_barrier")
        if "x_bartime" in OPTS:
            bar += ["s_memtime s[82:83]", "s_waitcnt lgkmcnt(0)", "s_add_u32 s93, s93, s82"]
        if cond_bar and role == "B":
            bar.append(f"s_add_u32 s{sBar}, s{sBar}, 1")
            bar.append(f"{lskip}:")
        cnt, dmas, ka, va = ring_ops()
        def mk(t, e, dl):
            o = op(t, 4, "salu" if t.startswith("s_") else "valu2"); o["e"] = e; o["dl"] = dl; return o
        if has_qk:
            first[BARGAP] += bar
            for t in cnt: ctl.append(mk(t, 0, 2))
            if role == "A":
                for t in dmas: ctl.append(mk(t, 0, BARGAP - 1))
            for t in ka: ctl.append(mk(t, 0, 7))
            for t in va: ctl.append(mk(t, 4, 11))
            if not (cond_bar and role == "B"):
                ctl.append(mk(f"s_add_u32 s{sBar}, s{sBar}, 1", 4, 99))
            if role == "A":
                seqs = []; dmaq = []
                for kd in ("K", "V"):
                    if kd == "K": srd, g_, m_, w_, step = sK, sKg, sKm, sKw, KP - 256
                    else: srd, g_, m_, w_, step = sV, sVg, sVm, sVw, VP - 256
                    for pp in range(4):
                        m0 = f"s_add_u32 m0, s{m_}, s{w_}" if pp == 0 else f"s_add_u32 m0, m0, {step}"
                        ld = f"buffer_load_dwordx4 v{vDma}, s[{srd}:{srd+3}], s{g_} offen offset:{pp*256} lds"
                        seqs.append((m0, ld))
                for i, (m0, ld) in enumerate(seqs):
                    g = BARGAP + 1 + i
                    pin[g - 1].append(m0)
                    dmaq.append((g, op(ld, 4, "dma")))
                for g, o_ in dmaq: mem[g].append(o_)
                pin[15] += [f"s_add_u32 s{sKg}, s{sKg}, 16384", f"s_add_u32 s{sVg}, s{sVg}, 16384"]
        else:
            pin[-1] += cnt + bar
            if not (cond_bar and role == "B"):
                pin[-1].append(f"s_add_u32 s{sBar}, s{sBar}, 1")
            if role == "A":
                pin[-1] += dmas + dma_group("K") + dma_group("V")
            pin[-1] += ka + va
    streams = []
    if has_sm2:
        s2 = sm_stream(1 - p, SM2_PAIRS, False)
        for o in s2: o["e"] = 0
        c = op(f"v_cmp_lt_f32 vcc, s{sThr}, v{vLs[1-p]}", 4, "valu2"); c["e"] = 0
        s2.append(c)
        streams.append(s2)
    if has_sm1:
        s1 = sm_stream(p, SM1_PAIRS, True)
        for o in s1:
            o["e"] = nq + 2
            if o["k"] == "cvt": o["e"] = nq + 3
        streams.append(s1)
    streams.insert(0, ctl)
    gaps = {g: [] for g in range(-1, ng)}
    pos = [0] * len(streams)
    endctl = 4 * ((2 if has_sm2 else 0) + (len(loopctl) if loopctl else 0))
    for g in range(0, ng):
        used = sum(o["c"] for o in mem[g]) + 4 * len([x for x in pin[g] + first[g] if not x.endswith(":")])
        if g in (7, ng - 1): used += 4
        if g == ng - 1: used += endctl
        last = (g == ng - 1)
        progress = True
        while progress:
            progress = False
            order = list(range(len(streams)))
            if pos[0] < len(ctl) and ctl[pos[0]].get("dl", 99) > g + 1:
                order = order[1:] + [0]
            for si in order:
                s = streams[si]
                if pos[si] < len(s):
                    o = s[pos[si]]
                    if has_sm1 and s is streams[-1] and has_sm2 and pos[1] < len(streams[1]):
                        continue
                    force = last or o.get("dl", 99) <= g
                    if o["e"] <= g and (used + o["c"] <= (BUDGET if (role == "B" or p == 0) else BUDGET_A) or force):
                        gaps[g].append(o); used += o["c"]; pos[si] += 1; progress = True
                        break
    for si, s in enumerate(streams):
        assert pos[si] == len(s), (kind, si, pos[si], len(s))
    out = []
    ldsq = list(prev_lds)
    mine = []
    waited_upto = [-1]
    cnt = [None]
    def put(t):
        out.append(t)
        if cnt[0] is not None and not t.endswith(":"): cnt[0] += 1
    def need(tags):
        lastpos = max(i for i, t in enumerate(ldsq) if t in tags)
        if lastpos > waited_upto[0]:
            n = len(ldsq) - 1 - lastpos
            assert n <= 15, n
            put(f"s_waitcnt lgkmcnt({n})")
            waited_upto[0] = lastpos
    def putop(o):
        drop = False
        if kind == "full":
            if "x_nolds" in OPTS and o["k"] == "lds": drop = True
            if "x_novalu" in OPTS and o["k"] in ("valu", "exp", "cvt", "nop"): drop = True
        if o["k"] == "lds":
            ldsq.append(o["frag"]); mine.append(o["frag"])
        if has_sm1 and o is streams[-1][0]:
            if cnt[0] < 12: put(f"s_nop {12 - cnt[0] - 1}")
        if not drop: put(o["t"])
    for o in mem[-1]: putop(o)
    for t in pin[-1]: put(t)
    post = None
    sm1_set = set(id(o) for o in streams[-1]) if has_sm1 else set()
    replay = []
    for g in range(ng):
        idx = M[g]["idx"]
        if idx == 0: need([("K", s) for s in range(8)])
        if idx == 8:
            if has_qk: need([("V", f) for f in range(8)])
            else: need([("V", f) for f in range(4)])
        if idx == 12: need([("V", f) for f in range(4, 8)])
        put(M[g]["t"])
        if has_qk and idx == 7: cnt[0] = 0
        if kind == "full" and g == ng - 1:
            lab, ret = rare_block(p, True, list(replay))
            put(f"s_cbranch_vccnz {lab}")
            put(f"{ret}:")
            if loopctl:
                put(loopctl[-1])
            body = out
            out = []
            post_start = True
        for t in first[g]: put(t)
        for o in mem[g]: putop(o)
        if kind == "full" and g == ng - 1:
            put(f"v_add_f32 v{vL}, v{vL}, v{vLs[1-p]}")
        for o in gaps[g]:
            putop(o)
            if id(o) in sm1_set: replay.append(o["t"])
        for t in pin[g]: put(t)
        if kind == "full" and g == ng - 2 and loopctl:
            for t in loopctl[:-1]: put(t)
    if kind == "full":
        post = out
        out = body
    elif has_sm2:
        lab, ret = rare_block(p, False)
        put(f"s_cbranch_vccnz {lab}")
        put(f"{ret}:")
        put(f"v_add_f32 v{vL}, v{vL}, v{vLs[1-p]}")
    costs = [sum(o["c"] for o in mem[g]) + sum(o["c"] for o in gaps[g]) + 4*len(pin[g] + first[g]) for g in range(0, ng)]
    return out, mine, costs, post

def emit_block(o):
    for s in o:
        if s.endswith(":"):
            lines.append(s)
        else:
            emit(s)

hdr = f"""; Kernarg layout for this problem (48 bytes, ptrs only, base s[0:1]):
; @launch grid=(256,1,1) block=(512,1,1) lds={LDS_BYTES}
.amdgcn_target "amdgcn-amd-amdhsa--gfx950"
.text
.globl {NAME}_kernel
.p2align 8
.type {NAME}_kernel,@function
{NAME}_kernel:"""
lines.append(hdr)

emit("s_cmp_ge_u32 s2, 256")
emit("s_cbranch_scc1 L_end")
emit("s_load_dwordx4 s[4:7], s[0:1], 0")
emit("s_load_dwordx4 s[8:11], s[0:1], 16")
if DIAG:
    emit("s_load_dwordx2 s[96:97], s[0:1], 40")
    for k in range(8): emit(f"s_mov_b32 s{84+k}, 0")
    emit("s_getreg_b32 s92, hwreg(HW_REG_HW_ID)")
    emit("s_mov_b32 s93, 0")
    emit("s_mov_b32 s94, 0")
    emit("s_mov_b32 s95, 0")
stamp(0)
emit(f"v_lshrrev_b32 v{vT0}, 6, v0")
emit(f"v_and_b32 v{vT1}, 63, v0")
emit(f"v_readfirstlane_b32 s{sW}, v{vT0}")
emit(f"s_and_b32 s{sHead}, s2, 7")
emit(f"s_lshl_b32 s{sHead}, s{sHead}, 2")
emit(f"s_lshr_b32 s{sTmp}, s2, 3")
emit(f"s_and_b32 s{sTmp}, s{sTmp}, 3")
emit(f"s_add_u32 s{sHead}, s{sHead}, s{sTmp}")
emit(f"s_lshr_b32 s{sI}, s2, 5")
emit(f"s_lshl_b32 s{sTmp}, s{sI}, 1")
emit(f"s_sub_u32 s{sT}, 32, s{sTmp}")
emit(f"s_lshl_b32 s{sTmp}, s{sI}, 2")
emit(f"s_add_u32 s{sN}, s{sTmp}, s{sW}")
emit(f"s_sub_u32 s{sTmp2}, 67, s{sTmp}")
emit(f"s_sub_u32 s{sTmp2}, s{sTmp2}, s{sW}")
emit(f"s_cmp_lt_u32 s{sW}, 4")
emit(f"s_cselect_b32 s{sIsA}, 1, 0")
emit(f"s_cselect_b32 s{sN}, s{sN}, s{sTmp2}")
emit(f"s_lshl_b32 s{sTmp}, s{sN}, 13")
emit(f"s_add_u32 s{sN}, s{sN}, 1")
emit(f"v_and_b32 v{vT2}, 31, v{vT1}")
emit(f"v_lshrrev_b32 v{vT3}, 5, v{vT1}")
emit(f"v_lshlrev_b32 v{vQoff}, 8, v{vT2}")
emit(f"v_lshl_add_u32 v{vQoff}, v{vT3}, 4, v{vQoff}")
emit(f"v_add_u32 v{vQoff}, s{sTmp}, v{vQoff}")
emit(f"v_lshlrev_b32 v{vQm}, 2, v{vT3}")
emit(f"v_sub_u32 v{vQm}, v{vT2}, v{vQm}")
emit(f"v_lshrrev_b32 v{vT0}, 4, v{vT1}")
emit(f"v_and_b32 v{vT2}, 15, v{vT1}")
emit(f"v_lshlrev_b32 v{vDma}, 12, v{vT0}")
emit(f"v_lshl_add_u32 v{vDma}, v{vT2}, 4, v{vDma}")
emit(f"s_and_b32 s{sTmp}, s{sW}, 3")
emit(f"s_lshl_b32 s{sTmp2}, s{sTmp}, 10")
emit(f"v_add_u32 v{vDma}, s{sTmp2}, v{vDma}")
emit(f"s_mul_i32 s{sKw}, s{sTmp}, {4*KP}")
emit(f"s_mul_i32 s{sVw}, s{sTmp}, {4*VP}")
emit(f"v_mul_u32_u24 v{vKbase}, {KP}, v{vT2}")
emit(f"v_and_b32 v{vT0}, 1, v{vT0}")
emit(f"v_lshl_add_u32 v{vKbase}, v{vT0}, 8, v{vKbase}")
emit(f"v_lshl_add_u32 v{vKbase}, v{vT3}, 4, v{vKbase}")
emit(f"v_lshrrev_b32 v{vT2}, 2, v{vT2}")
emit(f"v_lshl_add_u32 v{vT2}, v{vT3}, 2, v{vT2}")
emit(f"v_mul_u32_u24 v{vVbase}, {VP}, v{vT2}")
emit(f"v_lshl_add_u32 v{vVbase}, v{vT0}, 5, v{vVbase}")
emit(f"v_and_b32 v{vT2}, 3, v{vT1}")
emit(f"v_lshl_add_u32 v{vVbase}, v{vT2}, 3, v{vVbase}")
emit(f"v_add_u32 v{vVbase}, {KRING}, v{vVbase}")
emit(f"v_mov_b32 v{vKaddr}, v{vKbase}")
emit(f"v_mov_b32 v{vVaddr}, v{vVbase}")
import struct, math
def f32(x): return struct.unpack("<I", struct.pack("<f", x))[0]
emit(f"s_mov_b32 s{sC}, 0x{f32(math.log2(math.e) / math.sqrt(128.0)):08x}")
emit(f"s_mov_b32 s{sThr}, 0x{f32(65536.0):08x}")
emit(f"s_mov_b32 s{sBig}, 0x{f32(-1e30):08x}")
emit(f"s_mov_b32 s{sBar}, 0")
emit(f"s_mov_b32 s{sKg}, 0")
emit(f"s_mov_b32 s{sVg}, 0")
emit(f"s_mov_b32 s{sCr}, 3")
emit(f"s_lshl_b32 s{sTmp}, s{sHead}, 19")
emit(f"s_lshl_b32 s{sTmp2}, s{sT}, 14")
emit("s_waitcnt lgkmcnt(0)")
for srd, ptr, nrec in ((sQ, 4, None), (sK, 6, sTmp2), (sV, 8, sTmp2), (sO, 10, None)):
    emit(f"s_add_u32 s{srd}, s{ptr}, s{sTmp}")
    emit(f"s_addc_u32 s{srd+1}, s{ptr+1}, 0")
    emit(f"s_and_b32 s{srd+1}, s{srd+1}, 0xffff")
    if nrec is None:
        emit(f"s_mov_b32 s{srd+2}, 524288")
    else:
        emit(f"s_mov_b32 s{srd+2}, s{nrec}")
    emit(f"s_mov_b32 s{srd+3}, 0x00020000")

def qstage():
    emit(f"s_mul_i32 s{sTmp}, s{sW}, {QST}")
    emit(f"s_add_u32 s{sTmp2}, s{sTmp}, {KRING + 2*VSLOT - 2*QST}")
    emit(f"s_add_u32 s{sRem}, s{sTmp}, {RINGS - 6*QST}")
    emit(f"s_add_u32 s{sTmp}, s{sTmp}, {3*KSLOT}")
    emit(f"s_cmp_ge_u32 s{sW}, 2")
    emit(f"s_cselect_b32 s{sTmp}, s{sTmp2}, s{sTmp}")
    emit(f"s_cmp_ge_u32 s{sW}, 6")
    emit(f"s_cselect_b32 s{sTmp}, s{sRem}, s{sTmp}")
    emit(f"s_mov_b32 s{sTmp2}, 4096")
    for p in range(8):
        emit(f"s_add_u32 m0, s{sTmp}, {p*1040 - (p%4)*1024}")
        emit("s_nop 0")
        so = "0" if p < 4 else f"s{sTmp2}"
        emit(f"buffer_load_dwordx4 v{vT2}, s[{sQ}:{sQ+3}], {so} offen offset:{(p%4)*1024} lds")
    emit(f"v_add_u32 v{vT3}, s{sTmp}, v{vT3}")
def qread():
    for s in range(8):
        emit(f"ds_read_b128 {vr(vQ+4*s,4)}, v{vT3} offset:{32*s}")
def init_regs():
    for r in range(64):
        emit(f"v_mov_b32 v{vO+r}, 0")
    for r in range(16):
        emit(f"v_mov_b32 v{vNM+r}, 0")
emit(f"v_and_b32 v{vT1}, 63, v0")
emit(f"s_sub_u32 s{sTmp}, s{sN}, 1")
emit(f"s_lshl_b32 s{sTmp}, s{sTmp}, 13")
emit(f"v_lshlrev_b32 v{vT2}, 4, v{vT1}")
emit(f"v_add_u32 v{vT2}, s{sTmp}, v{vT2}")
emit(f"v_bfe_u32 v{vT0}, v{vT1}, 2, 3")
emit(f"v_mul_u32_u24 v{vT3}, 1040, v{vT0}")
emit(f"v_and_b32 v{vT0}, 3, v{vT1}")
emit(f"v_lshl_add_u32 v{vT3}, v{vT0}, 8, v{vT3}")
emit(f"v_lshrrev_b32 v{vT0}, 5, v{vT1}")
emit(f"v_lshl_add_u32 v{vT3}, v{vT0}, 4, v{vT3}")
emit(f"s_cmp_eq_u32 s{sIsA}, 0")
emit("s_cbranch_scc1 L_proB")
emit_block(dma_group("K", 0))
qstage()
emit_block(dma_group("K", 1))
emit_block(dma_group("V", 0))
emit_block(dma_group("K", 2))
emit_block(dma_group("V", 1))
init_regs()
emit(f"s_cmp_lg_u32 s{sN}, 1")
emit("s_cbranch_scc1 L_nomask0")
emit_block(mask_snippet())
label("L_nomask0")
emit("s_waitcnt vmcnt(24)")
emit("s_barrier")
for s in range(8):
    emit(kread(s, 0)["t"])
for s in range(8):
    emit(kread(s, 1, vVf)["t"])
emit("s_waitcnt vmcnt(16)")
emit("s_branch L_wqJ")
label("L_proB")
qstage()
init_regs()
emit("s_barrier")
for s in range(8):
    emit(kread(s, 0)["t"])
for s in range(8):
    emit(kread(s, 1, vVf)["t"])
emit("s_waitcnt vmcnt(0)")
label("L_wqJ")
qread()
emit("s_waitcnt lgkmcnt(0)")
stamp(1)
emit(f"s_mov_b32 s{sTmp}, 0xffff0000")
for r in range(32):
    q = vQ + r
    emit(f"v_lshlrev_b32 v{vT0}, 16, v{q}")
    emit(f"v_and_b32 v{vT1}, s{sTmp}, v{q}")
    emit(f"v_mul_f32 v{vT0}, s{sC}, v{vT0}")
    emit(f"v_mul_f32 v{vT1}, s{sC}, v{vT1}")
    emit(f"v_cvt_pk_bf16_f32 v{q}, v{vT0}, v{vT1}")
stamp(2)
emit("s_waitcnt lgkmcnt(8)")
for s in range(8):
    emit(mfma(vS[0], vKf + 4*s, vQ + 4*s, vNM if s == 0 else vS[0]))
emit("s_nop 7"); emit("s_nop 7")
S = vS[0]
emit(f"v_max3_f32 v{vT0}, v{S}, v{S+1}, v{S+2}")
for r in range(3, 15, 2):
    emit(f"v_max3_f32 v{vT0}, v{vT0}, v{S+r}, v{S+r+1}")
emit(f"v_max_f32 v{vT0}, v{vT0}, v{S+15}")
emit(f"v_mov_b32 v{vT1}, v{vT0}")
emit("s_nop 1")
emit(f"v_permlane32_swap_b32 v{vT0}, v{vT1}")
emit("s_nop 1")
emit(f"v_max_f32 v{vT0}, v{vT0}, v{vT1}")
for r in range(16):
    emit(f"v_sub_f32 v{vNM+r}, 0, v{vT0}")
for r in range(16):
    emit(f"v_sub_f32 v{S+r}, v{S+r}, v{vT0}")
emit(f"s_cmp_lg_u32 s{sN}, 2")
emit("s_cbranch_scc1 L_nomask1")
emit_block(mask_snippet())
label("L_nomask1")
emit("s_waitcnt lgkmcnt(0)")
for s in range(8):
    emit(mfma(vS[1], vVf + 4*s, vQ + 4*s, vNM if s == 0 else vS[1]))
for x in sm_stream(0, list(range(8)), True):
    emit(x["t"])
emit(f"v_mov_b32 v{vL}, v{vLs[0]}")
emit_block(duty(False))
for s in range(8):
    emit(kread(s, 0)["t"])
for f in range(4):
    for sec in range(2):
        emit(vread(f, 0, sec)["t"])
for x in sm_stream(1, SM1_PAIRS, True):
    emit(x["t"])
emit("s_waitcnt lgkmcnt(0)")
stamp(3)
emit(f"s_sub_u32 s{sRem}, s{sN}, 4")
emit(f"s_cmp_eq_u32 s{sIsA}, 0")
emit("s_cbranch_scc1 L_loop0e_B")
emit(f"s_cmp_eq_u32 s{sN}, 1")
emit("s_cbranch_scc1 L_tail2_0_A")
emit(f"s_cmp_eq_u32 s{sN}, 2")
emit("s_cbranch_scc1 L_tail1_0e_A")
emit(f"s_cmp_eq_u32 s{sN}, 3")
emit("s_cbranch_scc1 L_chain0e_A")
emit("s_branch L_loop0e_A")

_, full_lds, _, _ = half_iter(0, "full", [("K", s) for s in range(8)] + [("V", f) for f in range(4)], "B")
rare_blocks.clear(); uid[0] = 1000

for role in ("A", "B"):
    o0, l0, c0, post0 = half_iter(0, "full", full_lds, role,
                          loopctl=[f"s_sub_u32 s{sRem}, s{sRem}, 1", f"s_cbranch_scc1 L_chain1_{role}"])
    o1, l1, c1, post1 = half_iter(1, "full", full_lds, role,
                          loopctl=[f"s_sub_u32 s{sRem}, s{sRem}, 1", f"s_cbranch_scc0 L_loop0_{role}"])
    posts = [post0, post1]
    lines.append(".p2align 3")
    label(f"L_loop0_{role}")
    emit_block(post1)
    label(f"L_loop0e_{role}")
    emit_block(o0)
    label(f"L_loop1_{role}")
    emit_block(post0)
    emit_block(o1)
    print(role, "gap costs p0", c0, file=sys.stderr)
    print(role, "gap costs p1", c1, file=sys.stderr)
    assert l0 == full_lds and l1 == full_lds
    for p in (0, 1):
        label(f"L_chain{p}_{role}")
        emit_block(posts[1 - p])
        label(f"L_chain{p}e_{role}")
        stamp(4)
        emit_block(mask_snippet())
        o, lf, _, post = half_iter(p, "full", full_lds, role, cond_bar=True)
        emit_block(o)
        emit_block(post)
        label(f"L_tail1_{1-p}e_{role}")
        o, lt1, _, _ = half_iter(1 - p, "tail1", full_lds, role, cond_bar=True)
        emit_block(o)
        label(f"L_tail2_{p}_{role}")
        o, lt2, _, _ = half_iter(p, "tail2", lt1, role, cond_bar=True)
        emit_block(o)
        if not (p == 1 and role == "B"):
            emit("s_branch L_epi")

label("L_epi")
emit(f"s_cmp_lg_u32 s{sIsA}, 0")
emit("s_cbranch_scc1 L_epi2")
label("L_bbar")
emit(f"s_cmp_ge_u32 s{sBar}, s{sT}")
emit("s_cbranch_scc1 L_epi2")
emit("s_barrier")
emit(f"s_add_u32 s{sBar}, s{sBar}, 1")
emit("s_branch L_bbar")
label("L_epi2")
stamp(5)
emit(f"v_mov_b32 v{vT0}, v{vL}")
emit("s_nop 7")
emit(f"v_permlane32_swap_b32 v{vT0}, v{vL}")
emit("s_nop 7")
emit(f"v_add_f32 v{vL}, v{vL}, v{vT0}")
emit(f"v_rcp_f32 v{vT1}, v{vL}")
emit("s_nop 1")
for db in range(4):
    for k in range(2):
        b = vO + 16*db + 8*k
        stg = vKf + 4*(2*db + k)
        for r in range(8):
            emit(f"v_mul_f32 v{b+r}, v{b+r}, v{vT1}")
        for r in range(4):
            emit(f"v_cvt_pk_bf16_f32 v{stg+r}, v{b+2*r}, v{b+2*r+1}")
        emit("s_nop 1")
        emit(f"v_permlane32_swap_b32 v{stg}, v{stg+2}")
        emit(f"v_permlane32_swap_b32 v{stg+1}, v{stg+3}")
        emit("s_nop 1")
        emit(f"buffer_store_dwordx4 {vr(stg,4)}, v{vQoff}, s[{sO}:{sO+3}], 0 offen offset:{64*db + 32*k}")
stamp(7)
emit(f"s_cmp_eq_u32 s{sIsA}, 0")
emit("s_cbranch_scc1 L_loadend")
label("L_load")
emit(f"s_cmp_ge_u32 s{sBar}, s{sT}")
emit("s_cbranch_scc1 L_loadend")
if "x_ldtime" in OPTS:
    emit("s_memtime s[82:83]"); emit("s_waitcnt lgkmcnt(0)"); emit("s_sub_u32 s94, s94, s82")
emit("s_waitcnt vmcnt(8)")
if "x_ldtime" in OPTS:
    emit("s_memtime s[82:83]"); emit("s_waitcnt lgkmcnt(0)"); emit("s_add_u32 s94, s94, s82"); emit("s_sub_u32 s95, s95, s82")
emit("s_barrier")
if "x_ldtime" in OPTS:
    emit("s_memtime s[82:83]"); emit("s_waitcnt lgkmcnt(0)"); emit("s_add_u32 s95, s95, s82")
emit(f"s_add_u32 s{sBar}, s{sBar}, 1")
_c, _d, _, _ = ring_ops()
emit_block(_c + _d)
if "x_nodma" not in OPTS:
    emit_block(dma_group("K"))
    emit_block(dma_group("V"))
emit("s_branch L_load")
label("L_loadend")
emit("s_waitcnt vmcnt(0)")
if DIAG:
    stamp(6)
    emit("s_and_b32 s97, s97, 0xffff")
    emit("s_mov_b32 s98, 0x100000")
    emit("s_mov_b32 s99, 0x00020000")
    emit(f"s_lshl_b32 s{sTmp}, s2, 3")
    emit(f"s_add_u32 s{sTmp}, s{sTmp}, s{sW}")
    emit(f"s_lshl_b32 s{sTmp}, s{sTmp}, 6")
    emit(f"v_mov_b32 v0, s{sTmp}")
    for k in range(12):
        emit(f"v_mov_b32 v1, s{84+k}")
        emit(f"buffer_store_dword v1, v0, s[96:99], 0 offen offset:{4*k}")
    emit("s_waitcnt vmcnt(0)")
label("L_end")
emit("s_endpgm")
for rb in rare_blocks:
    emit_block(rb)
emit("s_endpgm")

lines.append(f""".section .rodata,"a"
.p2align 6
.amdhsa_kernel {NAME}_kernel
  .amdhsa_next_free_vgpr 256
  .amdhsa_next_free_sgpr 102
  .amdhsa_accum_offset 256
  .amdhsa_group_segment_fixed_size 0
  .amdhsa_kernarg_size 48
  .amdhsa_user_sgpr_count 2
  .amdhsa_user_sgpr_kernarg_segment_ptr 1
  .amdhsa_system_sgpr_workgroup_id_x 1
.end_amdhsa_kernel""")

if "x_nobar" in OPTS:
    lines = [l for l in lines if l.strip() != "s_barrier"]
open(OUT, "w").write("\n".join(lines) + "\n")
print("wrote", OUT, len(lines), "lines", file=sys.stderr)
```

```python
import sys

NAME = "standalone__softmax_full_causal__prompt"
ARGS = [a for a in sys.argv[1:] if not a.startswith("--")]
OPTS = dict((a[2:].split("=") + ["1"])[:2] for a in sys.argv[1:] if a.startswith("--"))
OUT = ARGS[0] if ARGS else f"cdna_kernels/{NAME}.s"
DIAG = "diag" in OPTS

KP = 1040
VP = 1088
KSLOT = 16 * KP
VSLOT = 16 * VP
NKS = 4
NVS = 4
KRING = NKS * KSLOT
RINGS = KRING + NVS * VSLOT
QST = 8 * 1040
LDS_BYTES = RINGS + 2 * QST

vO = 0
vQ = 64
vS = [96, 112]
vP = [128, 136]
vNM = 144
vKf = 160
vVf = 192
vE = 224
vLs = [228, 229]
vL = 230
vKaddr = 231
vVaddr = 232
vKbase = 233
vVbase = 234
vQoff = 235
vDma = 236
vQm = 237
vT0 = 238
vT1 = 239
vT2 = 240
vT3 = 241
NVGPR = 244

sQ = 12
sK = 16
sV = 20
sO = 24
sW = 28
sHead = 29
sI = 30
sN = 31
sRem = 32
sIsA = 33
sT = 34
sBar = 35
sKg = 36
sVg = 37
sKm = 38
sVm = 39
sKr = 40
sVr = 41
sC = 42
sThr = 43
sBig = 44
sTmp = 45
sTmp2 = 46
sKw = 47
sVw = 48
sCr = 49
sMask = 50

lines = []
def emit(s):
    lines.append("    " + s)
def label(s):
    lines.append(s + ":")
def comment(s):
    lines.append("    ; " + s)

def stamp(k):
    if DIAG:
        emit("s_memtime s[82:83]")
        emit("s_waitcnt lgkmcnt(0)")
        emit(f"s_mov_b32 s{84+k}, s82")

def vr(b, n):
    return f"v[{b}:{b+n-1}]"

def mfma(d, a, b, c):
    return f"v_mfma_f32_32x32x16_bf16 {vr(d,16)}, {vr(a,4)}, {vr(b,4)}, {vr(c,16)}"

def op(t, c=4, k="valu", **kw):
    d = dict(t=t, c=c, k=k)
    d.update(kw)
    return d

def sm_stream(p, pairs, first):
    S = vS[p]; P = vP[p]; L = vLs[p]
    def E(e): return op(f"v_exp_f32 v{vE + e % 4}, v{S + e}", 8, "exp")
    def A(e): return op(f"v_add_f32 v{L}, v{L}, v{vE + e % 4}")
    def A01(): return op(f"v_add_f32 v{L}, v{vE}, v{vE + 1}")
    def C(k): return op(f"v_cvt_pk_bf16_f32 v{P + k}, v{vE + (2*k) % 4}, v{vE + (2*k+1) % 4}", 4, "cvt", preg=k)
    ops = []
    k0 = pairs[0]
    ops.append(E(2*k0)); ops.append(E(2*k0+1))
    for idx, k in enumerate(pairs):
        nxt = pairs[idx+1] if idx + 1 < len(pairs) else None
        if nxt is not None:
            ops.append(E(2*nxt))
        elif k == 0:
            ops.append(op("s_nop 0", 4, "nop"))
        if k == 0:
            ops.append(A01())
        else:
            ops.append(A(2*k)); ops.append(A(2*k+1))
        ops.append(C(k))
        if nxt is not None:
            ops.append(E(2*nxt+1))
    return ops

SM1_PAIRS = [0, 1, 2]
SM2_PAIRS = [3, 4, 5, 6, 7]

def kread(s, blk, dst=None):
    d = (vKf if dst is None else dst) + 4*s
    return op(f"ds_read_b128 {vr(d,4)}, v{vKaddr} offset:{blk*512 + s*32}", 4, "lds", frag=("K", s))

def vread(f, blk, second):
    st, db = f // 4, f % 4
    d = vVf + 4*f + 2*second
    off = second * 8 * VP + (2*blk + st) * 256 + db * 64
    return op(f"ds_read_b64_tr_b16 {vr(d,2)}, v{vVaddr} offset:{off}", 4, "lds", frag=("V", f))

def dma_group(kind, slot=None):
    o = []
    if kind == "K":
        srd, g, m, w, step = sK, sKg, sKm, sKw, KP - 256
        if slot is not None: o.append(f"s_mov_b32 s{m}, {slot*KSLOT}")
    else:
        srd, g, m, w, step = sV, sVg, sVm, sVw, VP - 256
        if slot is not None: o.append(f"s_mov_b32 s{m}, {KRING + slot*VSLOT}")
    o.append(f"s_add_u32 m0, s{m}, s{w}")
    for pp in range(4):
        o.append("s_nop 0")
        o.append(f"buffer_load_dwordx4 v{vDma}, s[{srd}:{srd+3}], s{g} offen offset:{pp*256} lds")
        if pp < 3:
            o.append(f"s_add_u32 m0, m0, {step}")
    o.append(f"s_add_u32 s{g}, s{g}, 16384")
    return o

def ring_ops():
    cnt = [f"s_add_u32 s{sCr}, s{sCr}, 1", f"s_and_b32 s{sCr}, s{sCr}, 3"]
    dma = [f"s_add_u32 s{sKm}, s{sCr}, 3", f"s_and_b32 s{sKm}, s{sKm}, 3", f"s_mul_i32 s{sKm}, s{sKm}, {KSLOT}",
           f"s_xor_b32 s{sVm}, s{sCr}, 2", f"s_mul_i32 s{sVm}, s{sVm}, {VSLOT}", f"s_add_u32 s{sVm}, s{sVm}, {KRING}"]
    ka = [f"s_add_u32 s{sKr}, s{sCr}, 1", f"s_and_b32 s{sKr}, s{sKr}, 3", f"s_mul_i32 s{sKr}, s{sKr}, {KSLOT}",
          f"v_add_u32 v{vKaddr}, s{sKr}, v{vKbase}"]
    va = [f"s_mul_i32 s{sVr}, s{sCr}, {VSLOT}", f"v_add_u32 v{vVaddr}, s{sVr}, v{vVbase}"]
    return cnt, dma, ka, va

uid = [0]
def newlabel(p):
    uid[0] += 1
    return f"L_{p}_{uid[0]}"

def duty(cond):
    o = []
    lnodma = newlabel("nodma")
    cnt, dma, ka, va = ring_ops()
    o += cnt
    o.append("s_waitcnt vmcnt(8)")
    o.append("s_barrier")
    o.append(f"s_add_u32 s{sBar}, s{sBar}, 1")
    o.append(f"s_cmp_eq_u32 s{sIsA}, 0")
    o.append(f"s_cbranch_scc1 {lnodma}")
    o += dma
    o += dma_group("K")
    o += dma_group("V")
    o.append(f"{lnodma}:")
    o += ka + va
    return o

rare_blocks = []

def rare_block(p, has_next, replay=None):
    lab = newlabel("rare"); ret = newlabel("rareret")
    c = 1 - p
    o = []
    o.append(f"{lab}:")
    o.append("s_nop 7"); o.append("s_nop 7")
    S = vS[c]
    o.append(f"v_max3_f32 v{vT0}, v{S}, v{S+1}, v{S+2}")
    for r in range(3, 15, 2):
        o.append(f"v_max3_f32 v{vT0}, v{vT0}, v{S+r}, v{S+r+1}")
    o.append(f"v_max_f32 v{vT0}, v{vT0}, v{S+15}")
    o.append(f"v_mov_b32 v{vT1}, v{vT0}")
    o.append("s_nop 1")
    o.append(f"v_permlane32_swap_b32 v{vT0}, v{vT1}")
    o.append("s_nop 1")
    o.append(f"v_max_f32 v{vT0}, v{vT0}, v{vT1}")
    o.append(f"v_ceil_f32 v{vT0}, v{vT0}")
    o.append(f"v_max_f32 v{vT0}, 0, v{vT0}")
    o.append(f"v_exp_f32 v{vT1}, -v{vT0}")
    for r in range(16):
        o.append(f"v_sub_f32 v{vNM+r}, v{vNM+r}, v{vT0}")
    for r in range(16):
        o.append(f"v_sub_f32 v{S+r}, v{S+r}, v{vT0}")
    if has_next:
        for r in range(16):
            o.append(f"v_sub_f32 v{vS[p]+r}, v{vS[p]+r}, v{vT0}")
    for r in range(64):
        o.append(f"v_mul_f32 v{vO+r}, v{vO+r}, v{vT1}")
    o.append(f"v_mul_f32 v{vL}, v{vL}, v{vT1}")
    for x in sm_stream(c, list(range(8)), True):
        o.append(x["t"])
    if has_next:
        for t in replay:
            o.append(t)
    o.append("s_nop 1")
    o.append(f"s_branch {ret}")
    rare_blocks.append(o)
    return lab, ret

def mask_snippet():
    o = []
    for r in range(16):
        kv = 8*(r//4) + r % 4
        o.append(f"v_cmp_gt_i32 s[{sMask+2*r}:{sMask+2*r+1}], {kv}, v{vQm}")
    o.append(f"v_mov_b32 v{vT0}, s{sBig}")
    o.append("s_nop 1")
    for r in range(16):
        o.append(f"v_cndmask_b32 v{vNM+r}, v{vNM+r}, v{vT0}, s[{sMask+2*r}:{sMask+2*r+1}]")
    o.append("s_nop 1")
    return o

BUDGET = 24
BARGAP = int(OPTS.get('bargap', 7))
BUDGET_A = int(OPTS.get('ba', 30))

def half_iter(p, kind, prev_lds, role, cond_bar=False, loopctl=None):
    has_qk = kind == "full"
    has_sm2 = kind in ("full", "tail1")
    has_sm1 = kind == "full"
    has_vnext = kind in ("full", "tail1")
    blk = p
    M = []
    if has_qk:
        for s in range(8):
            M.append(dict(t=mfma(vS[p], vKf + 4*s, vQ + 4*s, vNM if s == 0 else vS[p]), idx=s))
    for st in range(2):
        for db in range(4):
            f = st*4 + db
            M.append(dict(t=mfma(vO + 16*db, vVf + 4*f, vP[p] + 4*st, vO + 16*db), idx=8+f))
    ng = len(M)
    nq = 8 if has_qk else 0
    mem = {g: [] for g in range(-1, ng)}
    pin = {g: [] for g in range(-1, ng)}
    first = {g: [] for g in range(-1, ng)}
    vl = [vread(f, blk, sec) for f in range(4, 8) for sec in range(2)]
    if has_qk:
        for i, o in enumerate(vl): mem[i // 2].append(o)
        for s in range(8): mem[8 + s // 2].append(kread(s, 1 - p))
        for f in range(4):
            for sec in range(2): mem[12 + f].append(vread(f, 1 - p, sec))
    else:
        for o in vl: mem[-1].append(o)
        if has_vnext:
            for f in range(4):
                for sec in range(2): mem[4 + f].append(vread(f, 1 - p, sec))
    ctl = []
    if p == 1:
        bar = []
        lskip = newlabel("skipbar")
        if cond_bar and role == "B":
            bar.append(f"s_cmp_ge_u32 s{sBar}, s{sT}")
            bar.append(f"s_cbranch_scc1 {lskip}")
        if role == "A":
            bar.append("s_waitcnt vmcnt(8)")
        if "x_bartime" in OPTS:
            bar += ["s_memtime s[82:83]", "s_waitcnt lgkmcnt(0)", "s_sub_u32 s93, s93, s82"]
        if "x_bartime2" in OPTS:
            bar += ["s_memtime s[82:83]", "s_waitcnt lgkmcnt(0)", "s_sub_u32 s93, s93, s82", "s_memtime s[82:83]", "s_waitcnt lgkmcnt(0)", "s_add_u32 s93, s93, s82"]
        bar.append("s_barrier")
        if "x_bartime" in OPTS:
            bar += ["s_memtime s[82:83]", "s_waitcnt lgkmcnt(0)", "s_add_u32 s93, s93, s82"]
        if cond_bar and role == "B":
            bar.append(f"s_add_u32 s{sBar}, s{sBar}, 1")
            bar.append(f"{lskip}:")
        cnt, dmas, ka, va = ring_ops()
        def mk(t, e, dl):
            o = op(t, 4, "salu" if t.startswith("s_") else "valu2"); o["e"] = e; o["dl"] = dl; return o
        if has_qk:
            first[BARGAP] += bar
            for t in cnt: ctl.append(mk(t, 0, 2))
            if role == "A":
                for t in dmas: ctl.append(mk(t, 0, BARGAP - 1))
            for t in ka: ctl.append(mk(t, 0, 7))
            for t in va: ctl.append(mk(t, 4, 11))
            if not (cond_bar and role == "B"):
                ctl.append(mk(f"s_add_u32 s{sBar}, s{sBar}, 1", 4, 99))
            if role == "A":
                seqs = []; dmaq = []
                for kd in ("K", "V"):
                    if kd == "K": srd, g_, m_, w_, step = sK, sKg, sKm, sKw, KP - 256
                    else: srd, g_, m_, w_, step = sV, sVg, sVm, sVw, VP - 256
                    for pp in range(4):
                        m0 = f"s_add_u32 m0, s{m_}, s{w_}" if pp == 0 else f"s_add_u32 m0, m0, {step}"
                        ld = f"buffer_load_dwordx4 v{vDma}, s[{srd}:{srd+3}], s{g_} offen offset:{pp*256} lds"
                        seqs.append((m0, ld))
                for i, (m0, ld) in enumerate(seqs):
                    g = BARGAP + 1 + i
                    pin[g - 1].append(m0)
                    dmaq.append((g, op(ld, 4, "dma")))
                for g, o_ in dmaq: mem[g].append(o_)
                pin[15] += [f"s_add_u32 s{sKg}, s{sKg}, 16384", f"s_add_u32 s{sVg}, s{sVg}, 16384"]
        else:
            pin[-1] += cnt + bar
            if not (cond_bar and role == "B"):
                pin[-1].append(f"s_add_u32 s{sBar}, s{sBar}, 1")
            if role == "A":
                pin[-1] += dmas + dma_group("K") + dma_group("V")
            pin[-1] += ka + va
    streams = []
    if has_sm2:
        s2 = sm_stream(1 - p, SM2_PAIRS, False)
        for o in s2: o["e"] = 0
        c = op(f"v_cmp_lt_f32 vcc, s{sThr}, v{vLs[1-p]}", 4, "valu2"); c["e"] = 0
        s2.append(c)
        streams.append(s2)
    if has_sm1:
        s1 = sm_stream(p, SM1_PAIRS, True)
        for o in s1:
            o["e"] = nq + 2
            if o["k"] == "cvt": o["e"] = nq + 3
        streams.append(s1)
    streams.insert(0, ctl)
    gaps = {g: [] for g in range(-1, ng)}
    pos = [0] * len(streams)
    endctl = 4 * ((2 if has_sm2 else 0) + (len(loopctl) if loopctl else 0))
    for g in range(0, ng):
        used = sum(o["c"] for o in mem[g]) + 4 * len([x for x in pin[g] + first[g] if not x.endswith(":")])
        if g in (7, ng - 1): used += 4
        if g == ng - 1: used += endctl
        last = (g == ng - 1)
        progress = True
        while progress:
            progress = False
            order = list(range(len(streams)))
            if pos[0] < len(ctl) and ctl[pos[0]].get("dl", 99) > g + 1:
                order = order[1:] + [0]
            for si in order:
                s = streams[si]
                if pos[si] < len(s):
                    o = s[pos[si]]
                    if has_sm1 and s is streams[-1] and has_sm2 and pos[1] < len(streams[1]):
                        continue
                    force = last or o.get("dl", 99) <= g
                    if o["e"] <= g and (used + o["c"] <= (BUDGET if (role == "B" or p == 0) else BUDGET_A) or force):
                        gaps[g].append(o); used += o["c"]; pos[si] += 1; progress = True
                        break
    for si, s in enumerate(streams):
        assert pos[si] == len(s), (kind, si, pos[si], len(s))
    out = []
    ldsq = list(prev_lds)
    mine = []
    waited_upto = [-1]
    cnt = [None]
    def put(t):
        out.append(t)
        if cnt[0] is not None and not t.endswith(":"): cnt[0] += 1
    def need(tags):
        lastpos = max(i for i, t in enumerate(ldsq) if t in tags)
        if lastpos > waited_upto[0]:
            n = len(ldsq) - 1 - lastpos
            assert n <= 15, n
            put(f"s_waitcnt lgkmcnt({n})")
            waited_upto[0] = lastpos
    def putop(o):
        drop = False
        if kind == "full":
            if "x_nolds" in OPTS and o["k"] == "lds": drop = True
            if "x_novalu" in OPTS and o["k"] in ("valu", "exp", "cvt", "nop"): drop = True
        if o["k"] == "lds":
            ldsq.append(o["frag"]); mine.append(o["frag"])
        if has_sm1 and o is streams[-1][0]:
            if cnt[0] < 12: put(f"s_nop {12 - cnt[0] - 1}")
        if not drop: put(o["t"])
    for o in mem[-1]: putop(o)
    for t in pin[-1]: put(t)
    post = None
    sm1_set = set(id(o) for o in streams[-1]) if has_sm1 else set()
    replay = []
    for g in range(ng):
        idx = M[g]["idx"]
        if idx == 0: need([("K", s) for s in range(8)])
        if idx == 8:
            if has_qk: need([("V", f) for f in range(8)])
            else: need([("V", f) for f in range(4)])
        if idx == 12: need([("V", f) for f in range(4, 8)])
        put(M[g]["t"])
        if has_qk and idx == 7: cnt[0] = 0
        if kind == "full" and g == ng - 1:
            lab, ret = rare_block(p, True, list(replay))
            put(f"s_cbranch_vccnz {lab}")
            put(f"{ret}:")
            if loopctl:
                put(loopctl[-1])
            body = out
            out = []
            post_start = True
        for t in first[g]: put(t)
        for o in mem[g]: putop(o)
        if kind == "full" and g == ng - 1:
            put(f"v_add_f32 v{vL}, v{vL}, v{vLs[1-p]}")
        for o in gaps[g]:
            putop(o)
            if id(o) in sm1_set: replay.append(o["t"])
        for t in pin[g]: put(t)
        if kind == "full" and g == ng - 2 and loopctl:
            for t in loopctl[:-1]: put(t)
    if kind == "full":
        post = out
        out = body
    elif has_sm2:
        lab, ret = rare_block(p, False)
        put(f"s_cbranch_vccnz {lab}")
        put(f"{ret}:")
        put(f"v_add_f32 v{vL}, v{vL}, v{vLs[1-p]}")
    costs = [sum(o["c"] for o in mem[g]) + sum(o["c"] for o in gaps[g]) + 4*len(pin[g] + first[g]) for g in range(0, ng)]
    return out, mine, costs, post

def emit_block(o):
    for s in o:
        if s.endswith(":"):
            lines.append(s)
        else:
            emit(s)

hdr = f"""; Kernarg layout for this problem (48 bytes, ptrs only, base s[0:1]):
; @launch grid=(256,1,1) block=(512,1,1) lds={LDS_BYTES}
.amdgcn_target "amdgcn-amd-amdhsa--gfx950"
.text
.globl {NAME}_kernel
.p2align 8
.type {NAME}_kernel,@function
{NAME}_kernel:"""
lines.append(hdr)

emit("s_cmp_ge_u32 s2, 256")
emit("s_cbranch_scc1 L_end")
emit("s_load_dwordx4 s[4:7], s[0:1], 0")
emit("s_load_dwordx4 s[8:11], s[0:1], 16")
if DIAG:
    emit("s_load_dwordx2 s[96:97], s[0:1], 40")
    for k in range(8): emit(f"s_mov_b32 s{84+k}, 0")
    emit("s_getreg_b32 s92, hwreg(HW_REG_HW_ID)")
    emit("s_mov_b32 s93, 0")
    emit("s_mov_b32 s94, 0")
    emit("s_mov_b32 s95, 0")
stamp(0)
emit(f"v_lshrrev_b32 v{vT0}, 6, v0")
emit(f"v_and_b32 v{vT1}, 63, v0")
emit(f"v_readfirstlane_b32 s{sW}, v{vT0}")
emit(f"s_and_b32 s{sHead}, s2, 7")
emit(f"s_lshl_b32 s{sHead}, s{sHead}, 2")
emit(f"s_lshr_b32 s{sTmp}, s2, 3")
emit(f"s_and_b32 s{sTmp}, s{sTmp}, 3")
emit(f"s_add_u32 s{sHead}, s{sHead}, s{sTmp}")
emit(f"s_lshr_b32 s{sI}, s2, 5")
emit(f"s_lshl_b32 s{sTmp}, s{sI}, 1")
emit(f"s_sub_u32 s{sT}, 32, s{sTmp}")
emit(f"s_lshl_b32 s{sTmp}, s{sI}, 2")
emit(f"s_add_u32 s{sN}, s{sTmp}, s{sW}")
emit(f"s_sub_u32 s{sTmp2}, 67, s{sTmp}")
emit(f"s_sub_u32 s{sTmp2}, s{sTmp2}, s{sW}")
emit(f"s_cmp_lt_u32 s{sW}, 4")
emit(f"s_cselect_b32 s{sIsA}, 1, 0")
emit(f"s_cselect_b32 s{sN}, s{sN}, s{sTmp2}")
emit(f"s_lshl_b32 s{sTmp}, s{sN}, 13")
emit(f"s_add_u32 s{sN}, s{sN}, 1")
emit(f"v_and_b32 v{vT2}, 31, v{vT1}")
emit(f"v_lshrrev_b32 v{vT3}, 5, v{vT1}")
emit(f"v_lshlrev_b32 v{vQoff}, 8, v{vT2}")
emit(f"v_lshl_add_u32 v{vQoff}, v{vT3}, 4, v{vQoff}")
emit(f"v_add_u32 v{vQoff}, s{sTmp}, v{vQoff}")
emit(f"v_lshlrev_b32 v{vQm}, 2, v{vT3}")
emit(f"v_sub_u32 v{vQm}, v{vT2}, v{vQm}")
emit(f"v_lshrrev_b32 v{vT0}, 4, v{vT1}")
emit(f"v_and_b32 v{vT2}, 15, v{vT1}")
emit(f"v_lshlrev_b32 v{vDma}, 12, v{vT0}")
emit(f"v_lshl_add_u32 v{vDma}, v{vT2}, 4, v{vDma}")
emit(f"s_and_b32 s{sTmp}, s{sW}, 3")
emit(f"s_lshl_b32 s{sTmp2}, s{sTmp}, 10")
emit(f"v_add_u32 v{vDma}, s{sTmp2}, v{vDma}")
emit(f"s_mul_i32 s{sKw}, s{sTmp}, {4*KP}")
emit(f"s_mul_i32 s{sVw}, s{sTmp}, {4*VP}")
emit(f"v_mul_u32_u24 v{vKbase}, {KP}, v{vT2}")
emit(f"v_and_b32 v{vT0}, 1, v{vT0}")
emit(f"v_lshl_add_u32 v{vKbase}, v{vT0}, 8, v{vKbase}")
emit(f"v_lshl_add_u32 v{vKbase}, v{vT3}, 4, v{vKbase}")
emit(f"v_lshrrev_b32 v{vT2}, 2, v{vT2}")
emit(f"v_lshl_add_u32 v{vT2}, v{vT3}, 2, v{vT2}")
emit(f"v_mul_u32_u24 v{vVbase}, {VP}, v{vT2}")
emit(f"v_lshl_add_u32 v{vVbase}, v{vT0}, 5, v{vVbase}")
emit(f"v_and_b32 v{vT2}, 3, v{vT1}")
emit(f"v_lshl_add_u32 v{vVbase}, v{vT2}, 3, v{vVbase}")
emit(f"v_add_u32 v{vVbase}, {KRING}, v{vVbase}")
emit(f"v_mov_b32 v{vKaddr}, v{vKbase}")
emit(f"v_mov_b32 v{vVaddr}, v{vVbase}")
import struct, math
def f32(x): return struct.unpack("<I", struct.pack("<f", x))[0]
emit(f"s_mov_b32 s{sC}, 0x{f32(math.log2(math.e) / math.sqrt(128.0)):08x}")
emit(f"s_mov_b32 s{sThr}, 0x{f32(65536.0):08x}")
emit(f"s_mov_b32 s{sBig}, 0x{f32(-1e30):08x}")
emit(f"s_mov_b32 s{sBar}, 0")
emit(f"s_mov_b32 s{sKg}, 0")
emit(f"s_mov_b32 s{sVg}, 0")
emit(f"s_mov_b32 s{sCr}, 3")
emit(f"s_lshl_b32 s{sTmp}, s{sHead}, 19")
emit(f"s_lshl_b32 s{sTmp2}, s{sT}, 14")
emit("s_waitcnt lgkmcnt(0)")
for srd, ptr, nrec in ((sQ, 4, None), (sK, 6, sTmp2), (sV, 8, sTmp2), (sO, 10, None)):
    emit(f"s_add_u32 s{srd}, s{ptr}, s{sTmp}")
    emit(f"s_addc_u32 s{srd+1}, s{ptr+1}, 0")
    emit(f"s_and_b32 s{srd+1}, s{srd+1}, 0xffff")
    if nrec is None:
        emit(f"s_mov_b32 s{srd+2}, 524288")
    else:
        emit(f"s_mov_b32 s{srd+2}, s{nrec}")
    emit(f"s_mov_b32 s{srd+3}, 0x00020000")

def qstage():
    emit(f"s_mul_i32 s{sTmp}, s{sW}, {QST}")
    emit(f"s_add_u32 s{sTmp2}, s{sTmp}, {KRING + 2*VSLOT - 2*QST}")
    emit(f"s_add_u32 s{sRem}, s{sTmp}, {RINGS - 6*QST}")
    emit(f"s_add_u32 s{sTmp}, s{sTmp}, {3*KSLOT}")
    emit(f"s_cmp_ge_u32 s{sW}, 2")
    emit(f"s_cselect_b32 s{sTmp}, s{sTmp2}, s{sTmp}")
    emit(f"s_cmp_ge_u32 s{sW}, 6")
    emit(f"s_cselect_b32 s{sTmp}, s{sRem}, s{sTmp}")
    emit(f"s_mov_b32 s{sTmp2}, 4096")
    for p in range(8):
        emit(f"s_add_u32 m0, s{sTmp}, {p*1040 - (p%4)*1024}")
        emit("s_nop 0")
        so = "0" if p < 4 else f"s{sTmp2}"
        emit(f"buffer_load_dwordx4 v{vT2}, s[{sQ}:{sQ+3}], {so} offen offset:{(p%4)*1024} lds")
    emit(f"v_add_u32 v{vT3}, s{sTmp}, v{vT3}")
def qread():
    for s in range(8):
        emit(f"ds_read_b128 {vr(vQ+4*s,4)}, v{vT3} offset:{32*s}")
def init_regs():
    for r in range(64):
        emit(f"v_mov_b32 v{vO+r}, 0")
    for r in range(16):
        emit(f"v_mov_b32 v{vNM+r}, 0")
emit(f"v_and_b32 v{vT1}, 63, v0")
emit(f"s_sub_u32 s{sTmp}, s{sN}, 1")
emit(f"s_lshl_b32 s{sTmp}, s{sTmp}, 13")
emit(f"v_lshlrev_b32 v{vT2}, 4, v{vT1}")
emit(f"v_add_u32 v{vT2}, s{sTmp}, v{vT2}")
emit(f"v_bfe_u32 v{vT0}, v{vT1}, 2, 3")
emit(f"v_mul_u32_u24 v{vT3}, 1040, v{vT0}")
emit(f"v_and_b32 v{vT0}, 3, v{vT1}")
emit(f"v_lshl_add_u32 v{vT3}, v{vT0}, 8, v{vT3}")
emit(f"v_lshrrev_b32 v{vT0}, 5, v{vT1}")
emit(f"v_lshl_add_u32 v{vT3}, v{vT0}, 4, v{vT3}")
emit(f"s_cmp_eq_u32 s{sIsA}, 0")
emit("s_cbranch_scc1 L_proB")
emit_block(dma_group("K", 0))
qstage()
emit_block(dma_group("K", 1))
emit_block(dma_group("V", 0))
emit_block(dma_group("K", 2))
emit_block(dma_group("V", 1))
init_regs()
emit(f"s_cmp_lg_u32 s{sN}, 1")
emit("s_cbranch_scc1 L_nomask0")
emit_block(mask_snippet())
label("L_nomask0")
emit("s_waitcnt vmcnt(24)")
emit("s_barrier")
for s in range(8):
    emit(kread(s, 0)["t"])
for s in range(8):
    emit(kread(s, 1, vVf)["t"])
emit("s_waitcnt vmcnt(16)")
emit("s_branch L_wqJ")
label("L_proB")
qstage()
vG = 248
if "cpf" in OPTS:
    emit(f"s_cmp_lg_u32 s{sW}, 7")
    emit("s_cbranch_scc1 L_nocpf")
    emit("s_getpc_b64 s[100:101]")
    label("L_pcbase")
    emit(f"v_and_b32 v{vG}, 63, v0")
    emit(f"v_lshlrev_b32 v{vG}, 6, v{vG}")
    for k in range(int(OPTS["cpf"])):
        emit(f"global_load_dword v{vG+1+k%4}, v{vG}, s[100:101]")
        emit(f"v_add_u32 v{vG}, 4096, v{vG}")
    label("L_nocpf")
init_regs()
emit("s_barrier")
for s in range(8):
    emit(kread(s, 0)["t"])
for s in range(8):
    emit(kread(s, 1, vVf)["t"])
emit("s_waitcnt vmcnt(0)")
if "kvpf" in OPTS:
    emit(f"s_lshl_b32 s{sTmp}, s{sI}, 2")
    emit(f"s_add_u32 s{sTmp}, s{sTmp}, s{sW}")
    emit(f"s_sub_u32 s{sTmp}, s{sTmp}, 4")
    emit(f"s_lshl_b32 s{sTmp}, s{sTmp}, 14")
    emit(f"v_and_b32 v{vG}, 63, v0")
    emit(f"v_lshlrev_b32 v{vG}, 7, v{vG}")
    emit(f"v_add_u32 v{vG}, s{sTmp}, v{vG}")
    emit(f"v_add_u32 v{vG+1}, 8192, v{vG}")
    emit(f"s_mov_b32 s{sK+2}, 524288")
    emit(f"s_mov_b32 s{sV+2}, 524288")
    emit(f"buffer_load_dword v{vG+2}, v{vG}, s[{sK}:{sK+3}], 0 offen")
    emit(f"buffer_load_dword v{vG+3}, v{vG+1}, s[{sK}:{sK+3}], 0 offen")
    emit(f"buffer_load_dword v{vG+4}, v{vG}, s[{sV}:{sV+3}], 0 offen")
    emit(f"buffer_load_dword v{vG+5}, v{vG+1}, s[{sV}:{sV+3}], 0 offen")
label("L_wqJ")
qread()
emit("s_waitcnt lgkmcnt(0)")
stamp(1)
emit(f"s_mov_b32 s{sTmp}, 0xffff0000")
for r in range(32):
    q = vQ + r
    emit(f"v_lshlrev_b32 v{vT0}, 16, v{q}")
    emit(f"v_and_b32 v{vT1}, s{sTmp}, v{q}")
    emit(f"v_mul_f32 v{vT0}, s{sC}, v{vT0}")
    emit(f"v_mul_f32 v{vT1}, s{sC}, v{vT1}")
    emit(f"v_cvt_pk_bf16_f32 v{q}, v{vT0}, v{vT1}")
stamp(2)
emit("s_waitcnt lgkmcnt(8)")
for s in range(8):
    emit(mfma(vS[0], vKf + 4*s, vQ + 4*s, vNM if s == 0 else vS[0]))
emit("s_nop 7"); emit("s_nop 7")
S = vS[0]
emit(f"v_max3_f32 v{vT0}, v{S}, v{S+1}, v{S+2}")
for r in range(3, 15, 2):
    emit(f"v_max3_f32 v{vT0}, v{vT0}, v{S+r}, v{S+r+1}")
emit(f"v_max_f32 v{vT0}, v{vT0}, v{S+15}")
emit(f"v_mov_b32 v{vT1}, v{vT0}")
emit("s_nop 1")
emit(f"v_permlane32_swap_b32 v{vT0}, v{vT1}")
emit("s_nop 1")
emit(f"v_max_f32 v{vT0}, v{vT0}, v{vT1}")
for r in range(16):
    emit(f"v_sub_f32 v{vNM+r}, 0, v{vT0}")
for r in range(16):
    emit(f"v_sub_f32 v{S+r}, v{S+r}, v{vT0}")
emit(f"s_cmp_lg_u32 s{sN}, 2")
emit("s_cbranch_scc1 L_nomask1")
emit_block(mask_snippet())
label("L_nomask1")
emit("s_waitcnt lgkmcnt(0)")
for s in range(8):
    emit(mfma(vS[1], vVf + 4*s, vQ + 4*s, vNM if s == 0 else vS[1]))
for x in sm_stream(0, list(range(8)), True):
    emit(x["t"])
emit(f"v_mov_b32 v{vL}, v{vLs[0]}")
emit_block(duty(False))
for s in range(8):
    emit(kread(s, 0)["t"])
for f in range(4):
    for sec in range(2):
        emit(vread(f, 0, sec)["t"])
for x in sm_stream(1, SM1_PAIRS, True):
    emit(x["t"])
emit("s_waitcnt lgkmcnt(0)")
stamp(3)
emit(f"s_sub_u32 s{sRem}, s{sN}, 4")
emit(f"s_cmp_eq_u32 s{sIsA}, 0")
emit("s_cbranch_scc1 L_loop0e_B")
emit(f"s_cmp_eq_u32 s{sN}, 1")
emit("s_cbranch_scc1 L_tail2_0_A")
emit(f"s_cmp_eq_u32 s{sN}, 2")
emit("s_cbranch_scc1 L_tail1_0e_A")
emit(f"s_cmp_eq_u32 s{sN}, 3")
emit("s_cbranch_scc1 L_chain0e_A")
emit("s_branch L_loop0e_A")

_, full_lds, _, _ = half_iter(0, "full", [("K", s) for s in range(8)] + [("V", f) for f in range(4)], "B")
rare_blocks.clear(); uid[0] = 1000

for role in ("A", "B"):
    o0, l0, c0, post0 = half_iter(0, "full", full_lds, role,
                          loopctl=[f"s_sub_u32 s{sRem}, s{sRem}, 1", f"s_cbranch_scc1 L_chain1_{role}"])
    o1, l1, c1, post1 = half_iter(1, "full", full_lds, role,
                          loopctl=[f"s_sub_u32 s{sRem}, s{sRem}, 1", f"s_cbranch_scc0 L_loop0_{role}"])
    posts = [post0, post1]
    lines.append(".p2align 3")
    label(f"L_loop0_{role}")
    emit_block(post1)
    label(f"L_loop0e_{role}")
    emit_block(o0)
    label(f"L_loop1_{role}")
    emit_block(post0)
    emit_block(o1)
    print(role, "gap costs p0", c0, file=sys.stderr)
    print(role, "gap costs p1", c1, file=sys.stderr)
    assert l0 == full_lds and l1 == full_lds
    for p in (0, 1):
        label(f"L_chain{p}_{role}")
        emit_block(posts[1 - p])
        label(f"L_chain{p}e_{role}")
        stamp(4)
        emit_block(mask_snippet())
        o, lf, _, post = half_iter(p, "full", full_lds, role, cond_bar=True)
        emit_block(o)
        emit_block(post)
        label(f"L_tail1_{1-p}e_{role}")
        o, lt1, _, _ = half_iter(1 - p, "tail1", full_lds, role, cond_bar=True)
        emit_block(o)
        label(f"L_tail2_{p}_{role}")
        o, lt2, _, _ = half_iter(p, "tail2", lt1, role, cond_bar=True)
        emit_block(o)
        if not (p == 1 and role == "B"):
            emit("s_branch L_epi")

label("L_epi")
emit(f"s_cmp_lg_u32 s{sIsA}, 0")
emit("s_cbranch_scc1 L_epi2")
label("L_bbar")
emit(f"s_cmp_ge_u32 s{sBar}, s{sT}")
emit("s_cbranch_scc1 L_epi2")
emit("s_barrier")
emit(f"s_add_u32 s{sBar}, s{sBar}, 1")
emit("s_branch L_bbar")
label("L_epi2")
stamp(5)
emit(f"v_mov_b32 v{vT0}, v{vL}")
emit("s_nop 7")
emit(f"v_permlane32_swap_b32 v{vT0}, v{vL}")
emit("s_nop 7")
emit(f"v_add_f32 v{vL}, v{vL}, v{vT0}")
emit(f"v_rcp_f32 v{vT1}, v{vL}")
emit("s_nop 1")
for db in range(4):
    for k in range(2):
        b = vO + 16*db + 8*k
        stg = vKf + 4*(2*db + k)
        for r in range(8):
            emit(f"v_mul_f32 v{b+r}, v{b+r}, v{vT1}")
        for r in range(4):
            emit(f"v_cvt_pk_bf16_f32 v{stg+r}, v{b+2*r}, v{b+2*r+1}")
        emit("s_nop 1")
        emit(f"v_permlane32_swap_b32 v{stg}, v{stg+2}")
        emit(f"v_permlane32_swap_b32 v{stg+1}, v{stg+3}")
        emit("s_nop 1")
        emit(f"buffer_store_dwordx4 {vr(stg,4)}, v{vQoff}, s[{sO}:{sO+3}], 0 offen offset:{64*db + 32*k}")
stamp(7)
emit(f"s_cmp_eq_u32 s{sIsA}, 0")
emit("s_cbranch_scc1 L_loadend")
label("L_load")
emit(f"s_cmp_ge_u32 s{sBar}, s{sT}")
emit("s_cbranch_scc1 L_loadend")
if "x_ldtime" in OPTS:
    emit("s_memtime s[82:83]"); emit("s_waitcnt lgkmcnt(0)"); emit("s_sub_u32 s94, s94, s82")
emit("s_waitcnt vmcnt(8)")
if "x_ldtime" in OPTS:
    emit("s_memtime s[82:83]"); emit("s_waitcnt lgkmcnt(0)"); emit("s_add_u32 s94, s94, s82"); emit("s_sub_u32 s95, s95, s82")
emit("s_barrier")
if "x_ldtime" in OPTS:
    emit("s_memtime s[82:83]"); emit("s_waitcnt lgkmcnt(0)"); emit("s_add_u32 s95, s95, s82")
emit(f"s_add_u32 s{sBar}, s{sBar}, 1")
_c, _d, _, _ = ring_ops()
emit_block(_c + _d)
if "x_nodma" not in OPTS:
    emit_block(dma_group("K"))
    emit_block(dma_group("V"))
emit("s_branch L_load")
label("L_loadend")
emit("s_waitcnt vmcnt(0)")
if DIAG:
    stamp(6)
    emit("s_and_b32 s97, s97, 0xffff")
    emit("s_mov_b32 s98, 0x100000")
    emit("s_mov_b32 s99, 0x00020000")
    emit(f"s_lshl_b32 s{sTmp}, s2, 3")
    emit(f"s_add_u32 s{sTmp}, s{sTmp}, s{sW}")
    emit(f"s_lshl_b32 s{sTmp}, s{sTmp}, 6")
    emit(f"v_mov_b32 v0, s{sTmp}")
    for k in range(12):
        emit(f"v_mov_b32 v1, s{84+k}")
        emit(f"buffer_store_dword v1, v0, s[96:99], 0 offen offset:{4*k}")
    emit("s_waitcnt vmcnt(0)")
label("L_end")
emit("s_endpgm")
for rb in rare_blocks:
    emit_block(rb)
emit("s_endpgm")

lines.append(f""".section .rodata,"a"
.p2align 6
.amdhsa_kernel {NAME}_kernel
  .amdhsa_next_free_vgpr 256
  .amdhsa_next_free_sgpr 102
  .amdhsa_accum_offset 256
  .amdhsa_group_segment_fixed_size 0
  .amdhsa_kernarg_size 48
  .amdhsa_user_sgpr_count 2
  .amdhsa_user_sgpr_kernarg_segment_ptr 1
  .amdhsa_system_sgpr_workgroup_id_x 1
.end_amdhsa_kernel""")

if "x_nobar" in OPTS:
    lines = [l for l in lines if l.strip() != "s_barrier"]
open(OUT, "w").write("\n".join(lines) + "\n")
print("wrote", OUT, len(lines), "lines", file=sys.stderr)
```

```python
import sys

NAME = "standalone__softmax_full_causal__prompt"
ARGS = [a for a in sys.argv[1:] if not a.startswith("--")]
OPTS = dict((a[2:].split("=") + ["1"])[:2] for a in sys.argv[1:] if a.startswith("--"))
OUT = ARGS[0] if ARGS else f"cdna_kernels/{NAME}.s"
DIAG = "diag" in OPTS

KP = 1040
VP = 1088
KSLOT = 16 * KP
VSLOT = 16 * VP
NKS = 4
NVS = 4
KRING = NKS * KSLOT
RINGS = KRING + NVS * VSLOT
QST = 8 * 1040
LDS_BYTES = RINGS + 2 * QST

vO = 0
vQ = 64
vS = [96, 112]
vP = [128, 136]
vNM = 144
vKf = 160
vVf = 192
vE = 224
vLs = [228, 229]
vL = 230
vKaddr = 231
vVaddr = 232
vKbase = 233
vVbase = 234
vQoff = 235
vDma = 236
vQm = 237
vT0 = 238
vT1 = 239
vT2 = 240
vT3 = 241
NVGPR = 244

sQ = 12
sK = 16
sV = 20
sO = 24
sW = 28
sHead = 29
sI = 30
sN = 31
sRem = 32
sIsA = 33
sT = 34
sBar = 35
sKg = 36
sVg = 37
sKm = 38
sVm = 39
sKr = 40
sVr = 41
sC = 42
sThr = 43
sBig = 44
sTmp = 45
sTmp2 = 46
sKw = 47
sVw = 48
sCr = 49
sMask = 50

lines = []
def emit(s):
    lines.append("    " + s)
def label(s):
    lines.append(s + ":")
def comment(s):
    lines.append("    ; " + s)

def stamp(k):
    if DIAG:
        emit("s_memtime s[82:83]")
        emit("s_waitcnt lgkmcnt(0)")
        emit(f"s_mov_b32 s{84+k}, s82")

def vr(b, n):
    return f"v[{b}:{b+n-1}]"

def mfma(d, a, b, c):
    return f"v_mfma_f32_32x32x16_bf16 {vr(d,16)}, {vr(a,4)}, {vr(b,4)}, {vr(c,16)}"

def op(t, c=4, k="valu", **kw):
    d = dict(t=t, c=c, k=k)
    d.update(kw)
    return d

def sm_stream(p, pairs, first):
    S = vS[p]; P = vP[p]; L = vLs[p]
    def E(e): return op(f"v_exp_f32 v{vE + e % 4}, v{S + e}", 8, "exp")
    def A(e): return op(f"v_add_f32 v{L}, v{L}, v{vE + e % 4}")
    def A01(): return op(f"v_add_f32 v{L}, v{vE}, v{vE + 1}")
    def C(k): return op(f"v_cvt_pk_bf16_f32 v{P + k}, v{vE + (2*k) % 4}, v{vE + (2*k+1) % 4}", 4, "cvt", preg=k)
    ops = []
    k0 = pairs[0]
    ops.append(E(2*k0)); ops.append(E(2*k0+1))
    for idx, k in enumerate(pairs):
        nxt = pairs[idx+1] if idx + 1 < len(pairs) else None
        if nxt is not None:
            ops.append(E(2*nxt))
        elif k == 0:
            ops.append(op("s_nop 0", 4, "nop"))
        if k == 0:
            ops.append(A01())
        else:
            ops.append(A(2*k)); ops.append(A(2*k+1))
        ops.append(C(k))
        if nxt is not None:
            ops.append(E(2*nxt+1))
    return ops

NS1 = int(OPTS.get('ns1', 2))
SM1_PAIRS = list(range(NS1))
SM2_PAIRS = list(range(NS1, 8))

def kread(s, blk, dst=None):
    d = (vKf if dst is None else dst) + 4*s
    return op(f"ds_read_b128 {vr(d,4)}, v{vKaddr} offset:{blk*512 + s*32}", 4, "lds", frag=("K", s))

def vread(f, blk, second):
    st, db = f // 4, f % 4
    d = vVf + 4*f + 2*second
    off = second * 8 * VP + (2*blk + st) * 256 + db * 64
    return op(f"ds_read_b64_tr_b16 {vr(d,2)}, v{vVaddr} offset:{off}", 4, "lds", frag=("V", f))

def dma_group(kind, slot=None):
    o = []
    if kind == "K":
        srd, g, m, w, step = sK, sKg, sKm, sKw, KP - 256
        if slot is not None: o.append(f"s_mov_b32 s{m}, {slot*KSLOT}")
    else:
        srd, g, m, w, step = sV, sVg, sVm, sVw, VP - 256
        if slot is not None: o.append(f"s_mov_b32 s{m}, {KRING + slot*VSLOT}")
    o.append(f"s_add_u32 m0, s{m}, s{w}")
    for pp in range(4):
        o.append("s_nop 0")
        o.append(f"buffer_load_dwordx4 v{vDma}, s[{srd}:{srd+3}], s{g} offen offset:{pp*256} lds")
        if pp < 3:
            o.append(f"s_add_u32 m0, m0, {step}")
    o.append(f"s_add_u32 s{g}, s{g}, 16384")
    return o

def ring_ops():
    cnt = [f"s_add_u32 s{sCr}, s{sCr}, 1", f"s_and_b32 s{sCr}, s{sCr}, 3"]
    dma = [f"s_add_u32 s{sKm}, s{sCr}, 3", f"s_and_b32 s{sKm}, s{sKm}, 3", f"s_mul_i32 s{sKm}, s{sKm}, {KSLOT}",
           f"s_xor_b32 s{sVm}, s{sCr}, 2", f"s_mul_i32 s{sVm}, s{sVm}, {VSLOT}", f"s_add_u32 s{sVm}, s{sVm}, {KRING}"]
    ka = [f"s_add_u32 s{sKr}, s{sCr}, 1", f"s_and_b32 s{sKr}, s{sKr}, 3", f"s_mul_i32 s{sKr}, s{sKr}, {KSLOT}",
          f"v_add_u32 v{vKaddr}, s{sKr}, v{vKbase}"]
    va = [f"s_mul_i32 s{sVr}, s{sCr}, {VSLOT}", f"v_add_u32 v{vVaddr}, s{sVr}, v{vVbase}"]
    return cnt, dma, ka, va

uid = [0]
def newlabel(p):
    uid[0] += 1
    return f"L_{p}_{uid[0]}"

def duty(cond):
    o = []
    lnodma = newlabel("nodma")
    cnt, dma, ka, va = ring_ops()
    o += cnt
    o.append("s_waitcnt vmcnt(8)")
    o.append("s_barrier")
    o.append(f"s_add_u32 s{sBar}, s{sBar}, 1")
    o.append(f"s_cmp_eq_u32 s{sIsA}, 0")
    o.append(f"s_cbranch_scc1 {lnodma}")
    o += dma
    o += dma_group("K")
    o += dma_group("V")
    o.append(f"{lnodma}:")
    o += ka + va
    return o

rare_blocks = []

def rare_block(p, has_next, replay=None):
    lab = newlabel("rare"); ret = newlabel("rareret")
    c = 1 - p
    o = []
    o.append(f"{lab}:")
    o.append("s_nop 7"); o.append("s_nop 7")
    S = vS[c]
    o.append(f"v_max3_f32 v{vT0}, v{S}, v{S+1}, v{S+2}")
    for r in range(3, 15, 2):
        o.append(f"v_max3_f32 v{vT0}, v{vT0}, v{S+r}, v{S+r+1}")
    o.append(f"v_max_f32 v{vT0}, v{vT0}, v{S+15}")
    o.append(f"v_mov_b32 v{vT1}, v{vT0}")
    o.append("s_nop 1")
    o.append(f"v_permlane32_swap_b32 v{vT0}, v{vT1}")
    o.append("s_nop 1")
    o.append(f"v_max_f32 v{vT0}, v{vT0}, v{vT1}")
    o.append(f"v_ceil_f32 v{vT0}, v{vT0}")
    o.append(f"v_max_f32 v{vT0}, 0, v{vT0}")
    o.append(f"v_exp_f32 v{vT1}, -v{vT0}")
    for r in range(16):
        o.append(f"v_sub_f32 v{vNM+r}, v{vNM+r}, v{vT0}")
    for r in range(16):
        o.append(f"v_sub_f32 v{S+r}, v{S+r}, v{vT0}")
    if has_next:
        for r in range(16):
            o.append(f"v_sub_f32 v{vS[p]+r}, v{vS[p]+r}, v{vT0}")
    for r in range(64):
        o.append(f"v_mul_f32 v{vO+r}, v{vO+r}, v{vT1}")
    o.append(f"v_mul_f32 v{vL}, v{vL}, v{vT1}")
    for x in sm_stream(c, list(range(8)), True):
        o.append(x["t"])
    if has_next:
        for t in replay:
            o.append(t)
    o.append("s_nop 1")
    o.append(f"s_branch {ret}")
    rare_blocks.append(o)
    return lab, ret

def mask_snippet():
    o = []
    for r in range(16):
        kv = 8*(r//4) + r % 4
        o.append(f"v_cmp_gt_i32 s[{sMask+2*r}:{sMask+2*r+1}], {kv}, v{vQm}")
    o.append(f"v_mov_b32 v{vT0}, s{sBig}")
    o.append("s_nop 1")
    for r in range(16):
        o.append(f"v_cndmask_b32 v{vNM+r}, v{vNM+r}, v{vT0}, s[{sMask+2*r}:{sMask+2*r+1}]")
    o.append("s_nop 1")
    return o

BUDGET = int(OPTS.get('bb', 24))
BARGAP = int(OPTS.get('bargap', 7))
BUDGET_A = int(OPTS.get('ba', 30))

def half_iter(p, kind, prev_lds, role, cond_bar=False, loopctl=None):
    has_qk = kind == "full"
    has_sm2 = kind in ("full", "tail1")
    has_sm1 = kind == "full"
    has_vnext = kind in ("full", "tail1")
    blk = p
    M = []
    if has_qk:
        for s in range(8):
            M.append(dict(t=mfma(vS[p], vKf + 4*s, vQ + 4*s, vNM if s == 0 else vS[p]), idx=s))
    for st in range(2):
        for db in range(4):
            f = st*4 + db
            M.append(dict(t=mfma(vO + 16*db, vVf + 4*f, vP[p] + 4*st, vO + 16*db), idx=8+f))
    ng = len(M)
    nq = 8 if has_qk else 0
    mem = {g: [] for g in range(-1, ng)}
    pin = {g: [] for g in range(-1, ng)}
    first = {g: [] for g in range(-1, ng)}
    vl = [vread(f, blk, sec) for f in range(4, 8) for sec in range(2)]
    if has_qk:
        LP = OPTS.get("lp", "b")
        if LP in ("a", "c"):
            for i, o in enumerate(vl): mem[i // 2].append(o)
        else:
            for i, o in enumerate(vl): mem[min(i, 6)].append(o)
        if LP in ("a", "b"):
            for s in range(8): mem[8 + s // 2].append(kread(s, 1 - p))
            for f in range(4):
                for sec in range(2): mem[12 + f].append(vread(f, 1 - p, sec))
        else:
            ve = [vread(f, 1 - p, sec) for f in range(4) for sec in range(2)]
            for s in range(8): mem[8 + s].append(kread(s, 1 - p))
            slots = [9, 10, 11, 12, 13, 14, 15, 15]
            for i, o in enumerate(ve): mem[max(slots[i], 9 + i // 2)].append(o)
    else:
        for o in vl: mem[-1].append(o)
        if has_vnext:
            for f in range(4):
                for sec in range(2): mem[4 + f].append(vread(f, 1 - p, sec))
    ctl = []
    if p == 1:
        bar = []
        lskip = newlabel("skipbar")
        if cond_bar and role == "B":
            bar.append(f"s_cmp_ge_u32 s{sBar}, s{sT}")
            bar.append(f"s_cbranch_scc1 {lskip}")
        if role == "A":
            bar.append("s_waitcnt vmcnt(8)")
        if "x_bartime" in OPTS:
            bar += ["s_memtime s[82:83]", "s_waitcnt lgkmcnt(0)", "s_sub_u32 s93, s93, s82"]
        if "x_bartime2" in OPTS:
            bar += ["s_memtime s[82:83]", "s_waitcnt lgkmcnt(0)", "s_sub_u32 s93, s93, s82", "s_memtime s[82:83]", "s_waitcnt lgkmcnt(0)", "s_add_u32 s93, s93, s82"]
        bar.append("s_barrier")
        if "x_bartime" in OPTS:
            bar += ["s_memtime s[82:83]", "s_waitcnt lgkmcnt(0)", "s_add_u32 s93, s93, s82"]
        if cond_bar and role == "B":
            bar.append(f"s_add_u32 s{sBar}, s{sBar}, 1")
            bar.append(f"{lskip}:")
        cnt, dmas, ka, va = ring_ops()
        def mk(t, e, dl):
            o = op(t, 4, "salu" if t.startswith("s_") else "valu2"); o["e"] = e; o["dl"] = dl; return o
        if has_qk:
            first[BARGAP] += bar
            for t in cnt: ctl.append(mk(t, 0, 2))
            if role == "A":
                for t in dmas: ctl.append(mk(t, 0, BARGAP - 1))
            for t in ka: ctl.append(mk(t, 0, 7))
            for t in va: ctl.append(mk(t, 7, 11))
            if not (cond_bar and role == "B"):
                ctl.append(mk(f"s_add_u32 s{sBar}, s{sBar}, 1", 4, 99))
            if role == "A":
                seqs = []; dmaq = []
                for kd in ("K", "V"):
                    if kd == "K": srd, g_, m_, w_, step = sK, sKg, sKm, sKw, KP - 256
                    else: srd, g_, m_, w_, step = sV, sVg, sVm, sVw, VP - 256
                    for pp in range(4):
                        m0 = f"s_add_u32 m0, s{m_}, s{w_}" if pp == 0 else f"s_add_u32 m0, m0, {step}"
                        ld = f"buffer_load_dwordx4 v{vDma}, s[{srd}:{srd+3}], s{g_} offen offset:{pp*256} lds"
                        seqs.append((m0, ld))
                for i, (m0, ld) in enumerate(seqs):
                    g = BARGAP + 1 + i
                    pin[g - 1].append(m0)
                    dmaq.append((g, op(ld, 4, "dma")))
                for g, o_ in dmaq: mem[g].append(o_)
                pin[15] += [f"s_add_u32 s{sKg}, s{sKg}, 16384", f"s_add_u32 s{sVg}, s{sVg}, 16384"]
        else:
            pin[-1] += cnt + bar
            if not (cond_bar and role == "B"):
                pin[-1].append(f"s_add_u32 s{sBar}, s{sBar}, 1")
            if role == "A":
                pin[-1] += dmas + dma_group("K") + dma_group("V")
            pin[-1] += ka + va
    streams = []
    if has_sm2:
        s2 = sm_stream(1 - p, SM2_PAIRS, False)
        for o in s2: o["e"] = 0
        c = op(f"v_cmp_lt_f32 vcc, s{sThr}, v{vLs[1-p]}", 4, "valu2"); c["e"] = 0
        s2.append(c)
        streams.append(s2)
    if has_sm1:
        s1 = sm_stream(p, SM1_PAIRS, True)
        for o in s1:
            o["e"] = nq + 2
            if o["k"] == "cvt": o["e"] = nq + 3
        streams.append(s1)
    streams.insert(0, ctl)
    gaps = {g: [] for g in range(-1, ng)}
    pos = [0] * len(streams)
    endctl = 4 * ((2 if has_sm2 else 0) + (len(loopctl) if loopctl else 0))
    for g in range(0, ng):
        used = sum(o["c"] for o in mem[g]) + 4 * len([x for x in pin[g] + first[g] if not x.endswith(":")])
        if g in (7, ng - 1): used += 4
        if g == ng - 1: used += endctl
        last = (g == ng - 1)
        progress = True
        while progress:
            progress = False
            order = list(range(len(streams)))
            if pos[0] < len(ctl) and ctl[pos[0]].get("dl", 99) > g + 1:
                order = order[1:] + [0]
            for si in order:
                s = streams[si]
                if pos[si] < len(s):
                    o = s[pos[si]]
                    if has_sm1 and s is streams[-1] and has_sm2 and pos[1] < len(streams[1]):
                        continue
                    force = last or o.get("dl", 99) <= g
                    if o["e"] <= g and (used + o["c"] <= (BUDGET if (role == "B" or p == 0) else BUDGET_A) or force):
                        gaps[g].append(o); used += o["c"]; pos[si] += 1; progress = True
                        break
    for si, s in enumerate(streams):
        assert pos[si] == len(s), (kind, si, pos[si], len(s))
    if kind == "full":
        assert not any(o is streams[1][-1] for o in gaps[ng - 1]), "rare check compare too late"
    out = []
    ldsq = list(prev_lds)
    mine = []
    waited_upto = [-1]
    cnt = [None]
    def put(t):
        out.append(t)
        if cnt[0] is not None and not t.endswith(":"): cnt[0] += 1
    def need(tags):
        lastpos = max(i for i, t in enumerate(ldsq) if t in tags)
        if lastpos > waited_upto[0]:
            n = len(ldsq) - 1 - lastpos
            assert n <= 15, n
            put(f"s_waitcnt lgkmcnt({n})")
            waited_upto[0] = lastpos
    def putop(o):
        drop = False
        if kind == "full":
            if "x_nolds" in OPTS and o["k"] == "lds": drop = True
            if "x_novalu" in OPTS and o["k"] in ("valu", "exp", "cvt", "nop"): drop = True
        if o["k"] == "lds":
            ldsq.append(o["frag"]); mine.append(o["frag"])
        if has_sm1 and o is streams[-1][0]:
            if cnt[0] < 12: put(f"s_nop {12 - cnt[0] - 1}")
        if not drop: put(o["t"])
    for o in mem[-1]: putop(o)
    for t in pin[-1]: put(t)
    post = None
    sm1_set = set(id(o) for o in streams[-1]) if has_sm1 else set()
    replay = []
    for g in range(ng):
        idx = M[g]["idx"]
        if idx == 0: need([("K", s) for s in range(8)])
        if idx == 8:
            if has_qk: need([("V", f) for f in range(8)])
            else: need([("V", f) for f in range(4)])
        if idx == 12: need([("V", f) for f in range(4, 8)])
        put(M[g]["t"])
        if has_qk and idx == 7: cnt[0] = 0
        if kind == "full" and g == ng - 1:
            lab, ret = rare_block(p, True, list(replay))
            put(f"s_cbranch_vccnz {lab}")
            put(f"{ret}:")
            if loopctl:
                put(loopctl[-1])
            body = out
            out = []
            post_start = True
        for t in first[g]: put(t)
        for o in mem[g]: putop(o)
        if kind == "full" and g == ng - 1:
            put(f"v_add_f32 v{vL}, v{vL}, v{vLs[1-p]}")
        for o in gaps[g]:
            putop(o)
            if id(o) in sm1_set: replay.append(o["t"])
        for t in pin[g]: put(t)
        if kind == "full" and g == ng - 2 and loopctl:
            for t in loopctl[:-1]: put(t)
    if kind == "full":
        post = out
        out = body
    elif has_sm2:
        lab, ret = rare_block(p, False)
        put(f"s_cbranch_vccnz {lab}")
        put(f"{ret}:")
        put(f"v_add_f32 v{vL}, v{vL}, v{vLs[1-p]}")
    costs = [sum(o["c"] for o in mem[g]) + sum(o["c"] for o in gaps[g]) + 4*len(pin[g] + first[g]) for g in range(0, ng)]
    return out, mine, costs, post

def emit_block(o):
    for s in o:
        if s.endswith(":"):
            lines.append(s)
        else:
            emit(s)

hdr = f"""; Kernarg layout for this problem (48 bytes, ptrs only, base s[0:1]):
; @launch grid=(256,1,1) block=(512,1,1) lds={LDS_BYTES}
.amdgcn_target "amdgcn-amd-amdhsa--gfx950"
.text
.globl {NAME}_kernel
.p2align 8
.type {NAME}_kernel,@function
{NAME}_kernel:"""
lines.append(hdr)

emit("s_cmp_ge_u32 s2, 256")
emit("s_cbranch_scc1 L_end")
emit("s_load_dwordx4 s[4:7], s[0:1], 0")
emit("s_load_dwordx4 s[8:11], s[0:1], 16")
if DIAG:
    emit("s_load_dwordx2 s[96:97], s[0:1], 40")
    for k in range(8): emit(f"s_mov_b32 s{84+k}, 0")
    emit("s_getreg_b32 s92, hwreg(HW_REG_HW_ID)")
    emit("s_mov_b32 s93, 0")
    emit("s_mov_b32 s94, 0")
    emit("s_mov_b32 s95, 0")
stamp(0)
emit(f"v_lshrrev_b32 v{vT0}, 6, v0")
emit(f"v_and_b32 v{vT1}, 63, v0")
emit(f"v_readfirstlane_b32 s{sW}, v{vT0}")
emit(f"s_and_b32 s{sHead}, s2, 7")
emit(f"s_lshl_b32 s{sHead}, s{sHead}, 2")
emit(f"s_lshr_b32 s{sTmp}, s2, 3")
emit(f"s_and_b32 s{sTmp}, s{sTmp}, 3")
emit(f"s_add_u32 s{sHead}, s{sHead}, s{sTmp}")
emit(f"s_lshr_b32 s{sI}, s2, 5")
emit(f"s_lshl_b32 s{sTmp}, s{sI}, 1")
emit(f"s_sub_u32 s{sT}, 32, s{sTmp}")
emit(f"s_lshl_b32 s{sTmp}, s{sI}, 2")
emit(f"s_add_u32 s{sN}, s{sTmp}, s{sW}")
emit(f"s_sub_u32 s{sTmp2}, 67, s{sTmp}")
emit(f"s_sub_u32 s{sTmp2}, s{sTmp2}, s{sW}")
emit(f"s_cmp_lt_u32 s{sW}, 4")
emit(f"s_cselect_b32 s{sIsA}, 1, 0")
emit(f"s_cselect_b32 s{sN}, s{sN}, s{sTmp2}")
emit(f"s_lshl_b32 s{sTmp}, s{sN}, 13")
emit(f"s_add_u32 s{sN}, s{sN}, 1")
emit(f"v_and_b32 v{vT2}, 31, v{vT1}")
emit(f"v_lshrrev_b32 v{vT3}, 5, v{vT1}")
emit(f"v_lshlrev_b32 v{vQoff}, 8, v{vT2}")
emit(f"v_lshl_add_u32 v{vQoff}, v{vT3}, 4, v{vQoff}")
emit(f"v_add_u32 v{vQoff}, s{sTmp}, v{vQoff}")
emit(f"v_lshlrev_b32 v{vQm}, 2, v{vT3}")
emit(f"v_sub_u32 v{vQm}, v{vT2}, v{vQm}")
emit(f"v_lshrrev_b32 v{vT0}, 4, v{vT1}")
emit(f"v_and_b32 v{vT2}, 15, v{vT1}")
emit(f"v_lshlrev_b32 v{vDma}, 12, v{vT0}")
emit(f"v_lshl_add_u32 v{vDma}, v{vT2}, 4, v{vDma}")
emit(f"s_and_b32 s{sTmp}, s{sW}, 3")
emit(f"s_lshl_b32 s{sTmp2}, s{sTmp}, 10")
emit(f"v_add_u32 v{vDma}, s{sTmp2}, v{vDma}")
emit(f"s_mul_i32 s{sKw}, s{sTmp}, {4*KP}")
emit(f"s_mul_i32 s{sVw}, s{sTmp}, {4*VP}")
emit(f"v_mul_u32_u24 v{vKbase}, {KP}, v{vT2}")
emit(f"v_and_b32 v{vT0}, 1, v{vT0}")
emit(f"v_lshl_add_u32 v{vKbase}, v{vT0}, 8, v{vKbase}")
emit(f"v_lshl_add_u32 v{vKbase}, v{vT3}, 4, v{vKbase}")
emit(f"v_lshrrev_b32 v{vT2}, 2, v{vT2}")
emit(f"v_lshl_add_u32 v{vT2}, v{vT3}, 2, v{vT2}")
emit(f"v_mul_u32_u24 v{vVbase}, {VP}, v{vT2}")
emit(f"v_lshl_add_u32 v{vVbase}, v{vT0}, 5, v{vVbase}")
emit(f"v_and_b32 v{vT2}, 3, v{vT1}")
emit(f"v_lshl_add_u32 v{vVbase}, v{vT2}, 3, v{vVbase}")
emit(f"v_add_u32 v{vVbase}, {KRING}, v{vVbase}")
emit(f"v_mov_b32 v{vKaddr}, v{vKbase}")
emit(f"v_mov_b32 v{vVaddr}, v{vVbase}")
import struct, math
def f32(x): return struct.unpack("<I", struct.pack("<f", x))[0]
emit(f"s_mov_b32 s{sC}, 0x{f32(math.log2(math.e) / math.sqrt(128.0)):08x}")
emit(f"s_mov_b32 s{sThr}, 0x{f32(65536.0):08x}")
emit(f"s_mov_b32 s{sBig}, 0x{f32(-1e30):08x}")
emit(f"s_mov_b32 s{sBar}, 0")
emit(f"s_mov_b32 s{sKg}, 0")
emit(f"s_mov_b32 s{sVg}, 0")
emit(f"s_mov_b32 s{sCr}, 3")
emit(f"s_lshl_b32 s{sTmp}, s{sHead}, 19")
emit(f"s_lshl_b32 s{sTmp2}, s{sT}, 14")
emit("s_waitcnt lgkmcnt(0)")
for srd, ptr, nrec in ((sQ, 4, None), (sK, 6, sTmp2), (sV, 8, sTmp2), (sO, 10, None)):
    emit(f"s_add_u32 s{srd}, s{ptr}, s{sTmp}")
    emit(f"s_addc_u32 s{srd+1}, s{ptr+1}, 0")
    emit(f"s_and_b32 s{srd+1}, s{srd+1}, 0xffff")
    if nrec is None:
        emit(f"s_mov_b32 s{srd+2}, 524288")
    else:
        emit(f"s_mov_b32 s{srd+2}, s{nrec}")
    emit(f"s_mov_b32 s{srd+3}, 0x00020000")

def qstage():
    emit(f"s_mul_i32 s{sTmp}, s{sW}, {QST}")
    emit(f"s_add_u32 s{sTmp2}, s{sTmp}, {KRING + 2*VSLOT - 2*QST}")
    emit(f"s_add_u32 s{sRem}, s{sTmp}, {RINGS - 6*QST}")
    emit(f"s_add_u32 s{sTmp}, s{sTmp}, {3*KSLOT}")
    emit(f"s_cmp_ge_u32 s{sW}, 2")
    emit(f"s_cselect_b32 s{sTmp}, s{sTmp2}, s{sTmp}")
    emit(f"s_cmp_ge_u32 s{sW}, 6")
    emit(f"s_cselect_b32 s{sTmp}, s{sRem}, s{sTmp}")
    emit(f"s_mov_b32 s{sTmp2}, 4096")
    for p in range(8):
        emit(f"s_add_u32 m0, s{sTmp}, {p*1040 - (p%4)*1024}")
        emit("s_nop 0")
        so = "0" if p < 4 else f"s{sTmp2}"
        emit(f"buffer_load_dwordx4 v{vT2}, s[{sQ}:{sQ+3}], {so} offen offset:{(p%4)*1024} lds")
    emit(f"v_add_u32 v{vT3}, s{sTmp}, v{vT3}")
def qread():
    for s in range(8):
        emit(f"ds_read_b128 {vr(vQ+4*s,4)}, v{vT3} offset:{32*s}")
def init_regs():
    for r in range(64):
        emit(f"v_mov_b32 v{vO+r}, 0")
    for r in range(16):
        emit(f"v_mov_b32 v{vNM+r}, 0")
emit(f"v_and_b32 v{vT1}, 63, v0")
emit(f"s_sub_u32 s{sTmp}, s{sN}, 1")
emit(f"s_lshl_b32 s{sTmp}, s{sTmp}, 13")
emit(f"v_lshlrev_b32 v{vT2}, 4, v{vT1}")
emit(f"v_add_u32 v{vT2}, s{sTmp}, v{vT2}")
emit(f"v_bfe_u32 v{vT0}, v{vT1}, 2, 3")
emit(f"v_mul_u32_u24 v{vT3}, 1040, v{vT0}")
emit(f"v_and_b32 v{vT0}, 3, v{vT1}")
emit(f"v_lshl_add_u32 v{vT3}, v{vT0}, 8, v{vT3}")
emit(f"v_lshrrev_b32 v{vT0}, 5, v{vT1}")
emit(f"v_lshl_add_u32 v{vT3}, v{vT0}, 4, v{vT3}")
emit(f"s_cmp_eq_u32 s{sIsA}, 0")
emit("s_cbranch_scc1 L_proB")
emit_block(dma_group("K", 0))
if "aq" not in OPTS: qstage()
emit_block(dma_group("K", 1))
emit_block(dma_group("V", 0))
emit_block(dma_group("K", 2))
emit_block(dma_group("V", 1))
init_regs()
emit(f"s_cmp_lg_u32 s{sN}, 1")
emit("s_cbranch_scc1 L_nomask0")
emit_block(mask_snippet())
label("L_nomask0")
emit("s_waitcnt vmcnt(24)" if "aq" not in OPTS else "s_waitcnt vmcnt(16)")
emit("s_barrier")
if "aq" in OPTS: qstage()
for s in range(8):
    emit(kread(s, 0)["t"])
for s in range(8):
    emit(kread(s, 1, vVf)["t"])
emit("s_waitcnt vmcnt(16)" if "aq" not in OPTS else "s_waitcnt vmcnt(0)")
emit("s_branch L_wqJ")
label("L_proB")
qstage()
vG = 248
if "cpf" in OPTS:
    emit(f"s_cmp_lg_u32 s{sW}, 7")
    emit("s_cbranch_scc1 L_nocpf")
    emit("s_getpc_b64 s[100:101]")
    label("L_pcbase")
    emit(f"v_and_b32 v{vG}, 63, v0")
    emit(f"v_lshlrev_b32 v{vG}, 6, v{vG}")
    for k in range(int(OPTS["cpf"])):
        emit(f"global_load_dword v{vG+1+k%4}, v{vG}, s[100:101]")
        emit(f"v_add_u32 v{vG}, 4096, v{vG}")
    label("L_nocpf")
init_regs()
emit("s_barrier")
for s in range(8):
    emit(kread(s, 0)["t"])
for s in range(8):
    emit(kread(s, 1, vVf)["t"])
emit("s_waitcnt vmcnt(0)")
if "kvpf" in OPTS:
    emit(f"s_lshl_b32 s{sTmp}, s{sI}, 2")
    emit(f"s_add_u32 s{sTmp}, s{sTmp}, s{sW}")
    emit(f"s_sub_u32 s{sTmp}, s{sTmp}, 4")
    emit(f"s_lshl_b32 s{sTmp}, s{sTmp}, 14")
    emit(f"v_and_b32 v{vG}, 63, v0")
    emit(f"v_lshlrev_b32 v{vG}, 7, v{vG}")
    emit(f"v_add_u32 v{vG}, s{sTmp}, v{vG}")
    emit(f"v_add_u32 v{vG+1}, 8192, v{vG}")
    emit(f"s_mov_b32 s{sK+2}, 524288")
    emit(f"s_mov_b32 s{sV+2}, 524288")
    emit(f"buffer_load_dword v{vG+2}, v{vG}, s[{sK}:{sK+3}], 0 offen")
    emit(f"buffer_load_dword v{vG+3}, v{vG+1}, s[{sK}:{sK+3}], 0 offen")
    emit(f"buffer_load_dword v{vG+4}, v{vG}, s[{sV}:{sV+3}], 0 offen")
    emit(f"buffer_load_dword v{vG+5}, v{vG+1}, s[{sV}:{sV+3}], 0 offen")
label("L_wqJ")
qread()
emit("s_waitcnt lgkmcnt(0)")
stamp(1)
emit(f"s_mov_b32 s{sTmp}, 0xffff0000")
for r in range(32):
    q = vQ + r
    emit(f"v_lshlrev_b32 v{vT0}, 16, v{q}")
    emit(f"v_and_b32 v{vT1}, s{sTmp}, v{q}")
    emit(f"v_mul_f32 v{vT0}, s{sC}, v{vT0}")
    emit(f"v_mul_f32 v{vT1}, s{sC}, v{vT1}")
    emit(f"v_cvt_pk_bf16_f32 v{q}, v{vT0}, v{vT1}")
stamp(2)
emit("s_waitcnt lgkmcnt(8)")
for s in range(8):
    emit(mfma(vS[0], vKf + 4*s, vQ + 4*s, vNM if s == 0 else vS[0]))
emit("s_nop 7"); emit("s_nop 7")
S = vS[0]
emit(f"v_max3_f32 v{vT0}, v{S}, v{S+1}, v{S+2}")
for r in range(3, 15, 2):
    emit(f"v_max3_f32 v{vT0}, v{vT0}, v{S+r}, v{S+r+1}")
emit(f"v_max_f32 v{vT0}, v{vT0}, v{S+15}")
emit(f"v_mov_b32 v{vT1}, v{vT0}")
emit("s_nop 1")
emit(f"v_permlane32_swap_b32 v{vT0}, v{vT1}")
emit("s_nop 1")
emit(f"v_max_f32 v{vT0}, v{vT0}, v{vT1}")
for r in range(16):
    emit(f"v_sub_f32 v{vNM+r}, 0, v{vT0}")
for r in range(16):
    emit(f"v_sub_f32 v{S+r}, v{S+r}, v{vT0}")
emit(f"s_cmp_lg_u32 s{sN}, 2")
emit("s_cbranch_scc1 L_nomask1")
emit_block(mask_snippet())
label("L_nomask1")
emit("s_waitcnt lgkmcnt(0)")
for s in range(8):
    emit(mfma(vS[1], vVf + 4*s, vQ + 4*s, vNM if s == 0 else vS[1]))
for x in sm_stream(0, list(range(8)), True):
    emit(x["t"])
emit(f"v_mov_b32 v{vL}, v{vLs[0]}")
emit_block(duty(False))
for s in range(8):
    emit(kread(s, 0)["t"])
for f in range(4):
    for sec in range(2):
        emit(vread(f, 0, sec)["t"])
for x in sm_stream(1, SM1_PAIRS, True):
    emit(x["t"])
emit("s_waitcnt lgkmcnt(0)")
stamp(3)
emit(f"s_sub_u32 s{sRem}, s{sN}, 4")
emit(f"s_cmp_eq_u32 s{sIsA}, 0")
emit("s_cbranch_scc1 L_loop0e_B")
emit(f"s_cmp_eq_u32 s{sN}, 1")
emit("s_cbranch_scc1 L_tail2_0_A")
emit(f"s_cmp_eq_u32 s{sN}, 2")
emit("s_cbranch_scc1 L_tail1_0e_A")
emit(f"s_cmp_eq_u32 s{sN}, 3")
emit("s_cbranch_scc1 L_chain0e_A")
emit("s_branch L_loop0e_A")

_, full_lds, _, _ = half_iter(0, "full", [("K", s) for s in range(8)] + [("V", f) for f in range(4)], "B")
rare_blocks.clear(); uid[0] = 1000

for role in ("A", "B"):
    o0, l0, c0, post0 = half_iter(0, "full", full_lds, role,
                          loopctl=[f"s_sub_u32 s{sRem}, s{sRem}, 1", f"s_cbranch_scc1 L_chain1_{role}"])
    o1, l1, c1, post1 = half_iter(1, "full", full_lds, role,
                          loopctl=[f"s_sub_u32 s{sRem}, s{sRem}, 1", f"s_cbranch_scc0 L_loop0_{role}"])
    posts = [post0, post1]
    lines.append(".p2align 3")
    label(f"L_loop0_{role}")
    emit_block(post1)
    label(f"L_loop0e_{role}")
    emit_block(o0)
    label(f"L_loop1_{role}")
    emit_block(post0)
    emit_block(o1)
    print(role, "gap costs p0", c0, file=sys.stderr)
    print(role, "gap costs p1", c1, file=sys.stderr)
    assert l0 == full_lds and l1 == full_lds
    for p in (0, 1):
        label(f"L_chain{p}_{role}")
        emit_block(posts[1 - p])
        label(f"L_chain{p}e_{role}")
        stamp(4)
        emit_block(mask_snippet())
        o, lf, _, post = half_iter(p, "full", full_lds, role, cond_bar=True)
        emit_block(o)
        emit_block(post)
        label(f"L_tail1_{1-p}e_{role}")
        o, lt1, _, _ = half_iter(1 - p, "tail1", full_lds, role, cond_bar=True)
        emit_block(o)
        label(f"L_tail2_{p}_{role}")
        o, lt2, _, _ = half_iter(p, "tail2", lt1, role, cond_bar=True)
        emit_block(o)
        if not (p == 1 and role == "B"):
            emit("s_branch L_epi")

label("L_epi")
emit(f"s_cmp_lg_u32 s{sIsA}, 0")
emit("s_cbranch_scc1 L_epi2")
label("L_bbar")
emit(f"s_cmp_ge_u32 s{sBar}, s{sT}")
emit("s_cbranch_scc1 L_epi2")
emit("s_barrier")
emit(f"s_add_u32 s{sBar}, s{sBar}, 1")
emit("s_branch L_bbar")
label("L_epi2")
stamp(5)
emit(f"v_mov_b32 v{vT0}, v{vL}")
emit("s_nop 7")
emit(f"v_permlane32_swap_b32 v{vT0}, v{vL}")
emit("s_nop 7")
emit(f"v_add_f32 v{vL}, v{vL}, v{vT0}")
emit(f"v_rcp_f32 v{vT1}, v{vL}")
emit("s_nop 1")
for db in range(4):
    for k in range(2):
        b = vO + 16*db + 8*k
        stg = vKf + 4*(2*db + k)
        for r in range(8):
            emit(f"v_mul_f32 v{b+r}, v{b+r}, v{vT1}")
        for r in range(4):
            emit(f"v_cvt_pk_bf16_f32 v{stg+r}, v{b+2*r}, v{b+2*r+1}")
        emit("s_nop 1")
        emit(f"v_permlane32_swap_b32 v{stg}, v{stg+2}")
        emit(f"v_permlane32_swap_b32 v{stg+1}, v{stg+3}")
        emit("s_nop 1")
        emit(f"buffer_store_dwordx4 {vr(stg,4)}, v{vQoff}, s[{sO}:{sO+3}], 0 offen offset:{64*db + 32*k}")
stamp(7)
emit(f"s_cmp_eq_u32 s{sIsA}, 0")
emit("s_cbranch_scc1 L_loadend")
label("L_load")
emit(f"s_cmp_ge_u32 s{sBar}, s{sT}")
emit("s_cbranch_scc1 L_loadend")
if "x_ldtime" in OPTS:
    emit("s_memtime s[82:83]"); emit("s_waitcnt lgkmcnt(0)"); emit("s_sub_u32 s94, s94, s82")
emit("s_waitcnt vmcnt(8)")
if "x_ldtime" in OPTS:
    emit("s_memtime s[82:83]"); emit("s_waitcnt lgkmcnt(0)"); emit("s_add_u32 s94, s94, s82"); emit("s_sub_u32 s95, s95, s82")
emit("s_barrier")
if "x_ldtime" in OPTS:
    emit("s_memtime s[82:83]"); emit("s_waitcnt lgkmcnt(0)"); emit("s_add_u32 s95, s95, s82")
emit(f"s_add_u32 s{sBar}, s{sBar}, 1")
_c, _d, _, _ = ring_ops()
if "lsl" in OPTS: emit(f"s_sleep {OPTS['lsl']}")
emit_block(_c + _d)
if "x_nodma" not in OPTS:
    emit_block(dma_group("K"))
    emit_block(dma_group("V"))
emit("s_branch L_load")
label("L_loadend")
emit("s_waitcnt vmcnt(0)")
if DIAG:
    stamp(6)
    emit("s_and_b32 s97, s97, 0xffff")
    emit("s_mov_b32 s98, 0x100000")
    emit("s_mov_b32 s99, 0x00020000")
    emit(f"s_lshl_b32 s{sTmp}, s2, 3")
    emit(f"s_add_u32 s{sTmp}, s{sTmp}, s{sW}")
    emit(f"s_lshl_b32 s{sTmp}, s{sTmp}, 6")
    emit(f"v_mov_b32 v0, s{sTmp}")
    for k in range(12):
        emit(f"v_mov_b32 v1, s{84+k}")
        emit(f"buffer_store_dword v1, v0, s[96:99], 0 offen offset:{4*k}")
    emit("s_waitcnt vmcnt(0)")
label("L_end")
emit("s_endpgm")
for rb in rare_blocks:
    emit_block(rb)
emit("s_endpgm")

lines.append(f""".section .rodata,"a"
.p2align 6
.amdhsa_kernel {NAME}_kernel
  .amdhsa_next_free_vgpr 256
  .amdhsa_next_free_sgpr 102
  .amdhsa_accum_offset 256
  .amdhsa_group_segment_fixed_size 0
  .amdhsa_kernarg_size 48
  .amdhsa_user_sgpr_count 2
  .amdhsa_user_sgpr_kernarg_segment_ptr 1
  .amdhsa_system_sgpr_workgroup_id_x 1
.end_amdhsa_kernel""")

if "x_nobar" in OPTS:
    lines = [l for l in lines if l.strip() != "s_barrier"]
open(OUT, "w").write("\n".join(lines) + "\n")
print("wrote", OUT, len(lines), "lines", file=sys.stderr)
```

```python
import sys

NAME = "standalone__softmax_full_causal__prompt"
ARGS = [a for a in sys.argv[1:] if not a.startswith("--")]
OPTS = dict((a[2:].split("=") + ["1"])[:2] for a in sys.argv[1:] if a.startswith("--"))
OUT = ARGS[0] if ARGS else f"cdna_kernels/{NAME}.s"
DIAG = "diag" in OPTS

KP = 1040
VP = 1088
KSLOT = 16 * KP
VSLOT = 16 * VP
NKS = 4
NVS = 4
KRING = NKS * KSLOT
RINGS = KRING + NVS * VSLOT
QST = 8 * 1040
LDS_BYTES = RINGS + 2 * QST

vO = 0
vQ = 64
vS = [96, 112]
vP = [128, 136]
vNM = 144
vKf = 160
vVf = 192
vE = 224
vLs = [228, 229]
vL = 230
vKaddr = 231
vVaddr = 232
vKbase = 233
vVbase = 234
vQoff = 235
vDma = 236
vQm = 237
vT0 = 238
vT1 = 239
vT2 = 240
vT3 = 241
NVGPR = 244

sQ = 12
sK = 16
sV = 20
sO = 24
sW = 28
sHead = 29
sI = 30
sN = 31
sRem = 32
sIsA = 33
sT = 34
sBar = 35
sKg = 36
sVg = 37
sKm = 38
sVm = 39
sKr = 40
sVr = 41
sC = 42
sThr = 43
sBig = 44
sTmp = 45
sTmp2 = 46
sKw = 47
sVw = 48
sCr = 49
sMask = 50

lines = []
def emit(s):
    lines.append("    " + s)
def label(s):
    lines.append(s + ":")
def comment(s):
    lines.append("    ; " + s)

def stamp(k):
    if DIAG:
        emit("s_memtime s[82:83]")
        emit("s_waitcnt lgkmcnt(0)")
        emit(f"s_mov_b32 s{84+k}, s82")

def vr(b, n):
    return f"v[{b}:{b+n-1}]"

def mfma(d, a, b, c):
    return f"v_mfma_f32_32x32x16_bf16 {vr(d,16)}, {vr(a,4)}, {vr(b,4)}, {vr(c,16)}"

def op(t, c=4, k="valu", **kw):
    d = dict(t=t, c=c, k=k)
    d.update(kw)
    return d

def sm_stream(p, pairs, first):
    S = vS[p]; P = vP[p]; L = vLs[p]
    def E(e): return op(f"v_exp_f32 v{vE + e % 4}, v{S + e}", 8, "exp")
    def A(e): return op(f"v_add_f32 v{L}, v{L}, v{vE + e % 4}")
    def A01(): return op(f"v_add_f32 v{L}, v{vE}, v{vE + 1}")
    def C(k): return op(f"v_cvt_pk_bf16_f32 v{P + k}, v{vE + (2*k) % 4}, v{vE + (2*k+1) % 4}", 4, "cvt", preg=k)
    ops = []
    k0 = pairs[0]
    ops.append(E(2*k0)); ops.append(E(2*k0+1))
    for idx, k in enumerate(pairs):
        nxt = pairs[idx+1] if idx + 1 < len(pairs) else None
        if nxt is not None:
            ops.append(E(2*nxt))
        elif k == 0:
            ops.append(op("s_nop 0", 4, "nop"))
        if k == 0:
            ops.append(A01())
        else:
            ops.append(A(2*k)); ops.append(A(2*k+1))
        ops.append(C(k))
        if nxt is not None:
            ops.append(E(2*nxt+1))
    return ops

NS1 = int(OPTS.get('ns1', 2))
SM1_PAIRS = list(range(NS1))
SM2_PAIRS = list(range(NS1, 8))

def kread(s, blk, dst=None):
    d = (vKf if dst is None else dst) + 4*s
    return op(f"ds_read_b128 {vr(d,4)}, v{vKaddr} offset:{blk*512 + s*32}", 4, "lds", frag=("K", s))

def vread(f, blk, second):
    st, db = f // 4, f % 4
    d = vVf + 4*f + 2*second
    off = second * 8 * VP + (2*blk + st) * 256 + db * 64
    return op(f"ds_read_b64_tr_b16 {vr(d,2)}, v{vVaddr} offset:{off}", 4, "lds", frag=("V", f))

def dma_group(kind, slot=None):
    o = []
    if kind == "K":
        srd, g, m, w, step = sK, sKg, sKm, sKw, KP - 256
        if slot is not None: o.append(f"s_mov_b32 s{m}, {slot*KSLOT}")
    else:
        srd, g, m, w, step = sV, sVg, sVm, sVw, VP - 256
        if slot is not None: o.append(f"s_mov_b32 s{m}, {KRING + slot*VSLOT}")
    o.append(f"s_add_u32 m0, s{m}, s{w}")
    for pp in range(4):
        o.append("s_nop 0")
        o.append(f"buffer_load_dwordx4 v{vDma}, s[{srd}:{srd+3}], s{g} offen offset:{pp*256} lds")
        if pp < 3:
            o.append(f"s_add_u32 m0, m0, {step}")
    o.append(f"s_add_u32 s{g}, s{g}, 16384")
    return o

def ring_ops():
    cnt = [f"s_add_u32 s{sCr}, s{sCr}, 1", f"s_and_b32 s{sCr}, s{sCr}, 3"]
    dma = [f"s_add_u32 s{sKm}, s{sCr}, 3", f"s_and_b32 s{sKm}, s{sKm}, 3", f"s_mul_i32 s{sKm}, s{sKm}, {KSLOT}",
           f"s_xor_b32 s{sVm}, s{sCr}, 2", f"s_mul_i32 s{sVm}, s{sVm}, {VSLOT}", f"s_add_u32 s{sVm}, s{sVm}, {KRING}"]
    ka = [f"s_add_u32 s{sKr}, s{sCr}, 1", f"s_and_b32 s{sKr}, s{sKr}, 3", f"s_mul_i32 s{sKr}, s{sKr}, {KSLOT}",
          f"v_add_u32 v{vKaddr}, s{sKr}, v{vKbase}"]
    va = [f"s_mul_i32 s{sVr}, s{sCr}, {VSLOT}", f"v_add_u32 v{vVaddr}, s{sVr}, v{vVbase}"]
    return cnt, dma, ka, va

uid = [0]
def newlabel(p):
    uid[0] += 1
    return f"L_{p}_{uid[0]}"

def duty(cond):
    o = []
    lnodma = newlabel("nodma")
    cnt, dma, ka, va = ring_ops()
    o += cnt
    o.append("s_waitcnt vmcnt(8)")
    o.append("s_barrier")
    o.append(f"s_add_u32 s{sBar}, s{sBar}, 1")
    o.append(f"s_cmp_eq_u32 s{sIsA}, 0")
    o.append(f"s_cbranch_scc1 {lnodma}")
    o += dma
    o += dma_group("K")
    o += dma_group("V")
    o.append(f"{lnodma}:")
    o += ka + va
    return o

rare_blocks = []

def rare_block(p, has_next, replay=None):
    lab = newlabel("rare"); ret = newlabel("rareret")
    c = 1 - p
    o = []
    o.append(f"{lab}:")
    o.append("s_nop 7"); o.append("s_nop 7")
    S = vS[c]
    o.append(f"v_max3_f32 v{vT0}, v{S}, v{S+1}, v{S+2}")
    for r in range(3, 15, 2):
        o.append(f"v_max3_f32 v{vT0}, v{vT0}, v{S+r}, v{S+r+1}")
    o.append(f"v_max_f32 v{vT0}, v{vT0}, v{S+15}")
    o.append(f"v_mov_b32 v{vT1}, v{vT0}")
    o.append("s_nop 1")
    o.append(f"v_permlane32_swap_b32 v{vT0}, v{vT1}")
    o.append("s_nop 1")
    o.append(f"v_max_f32 v{vT0}, v{vT0}, v{vT1}")
    o.append(f"v_ceil_f32 v{vT0}, v{vT0}")
    o.append(f"v_max_f32 v{vT0}, 0, v{vT0}")
    o.append(f"v_exp_f32 v{vT1}, -v{vT0}")
    for r in range(16):
        o.append(f"v_sub_f32 v{vNM+r}, v{vNM+r}, v{vT0}")
    for r in range(16):
        o.append(f"v_sub_f32 v{S+r}, v{S+r}, v{vT0}")
    if has_next:
        for r in range(16):
            o.append(f"v_sub_f32 v{vS[p]+r}, v{vS[p]+r}, v{vT0}")
    for r in range(64):
        o.append(f"v_mul_f32 v{vO+r}, v{vO+r}, v{vT1}")
    o.append(f"v_mul_f32 v{vL}, v{vL}, v{vT1}")
    for x in sm_stream(c, list(range(8)), True):
        o.append(x["t"])
    if has_next:
        for t in replay:
            o.append(t)
    o.append("s_nop 1")
    o.append(f"s_branch {ret}")
    rare_blocks.append(o)
    return lab, ret

def mask_snippet():
    o = []
    for r in range(16):
        kv = 8*(r//4) + r % 4
        o.append(f"v_cmp_gt_i32 s[{sMask+2*r}:{sMask+2*r+1}], {kv}, v{vQm}")
    o.append(f"v_mov_b32 v{vT0}, s{sBig}")
    o.append("s_nop 1")
    for r in range(16):
        o.append(f"v_cndmask_b32 v{vNM+r}, v{vNM+r}, v{vT0}, s[{sMask+2*r}:{sMask+2*r+1}]")
    o.append("s_nop 1")
    return o

BUDGET = int(OPTS.get('bb', 24))
BARGAP = int(OPTS.get('bargap', 7))
BUDGET_A = int(OPTS.get('ba', 30))

def half_iter(p, kind, prev_lds, role, cond_bar=False, loopctl=None):
    has_qk = kind == "full"
    has_sm2 = kind in ("full", "tail1")
    has_sm1 = kind == "full"
    has_vnext = kind in ("full", "tail1")
    blk = p
    M = []
    if has_qk:
        for s in range(8):
            M.append(dict(t=mfma(vS[p], vKf + 4*s, vQ + 4*s, vNM if s == 0 else vS[p]), idx=s))
    for st in range(2):
        for db in range(4):
            f = st*4 + db
            M.append(dict(t=mfma(vO + 16*db, vVf + 4*f, vP[p] + 4*st, vO + 16*db), idx=8+f))
    ng = len(M)
    nq = 8 if has_qk else 0
    mem = {g: [] for g in range(-1, ng)}
    pin = {g: [] for g in range(-1, ng)}
    first = {g: [] for g in range(-1, ng)}
    vl = [vread(f, blk, sec) for f in range(4, 8) for sec in range(2)]
    if has_qk:
        LP = OPTS.get("lp", "b")
        if LP in ("a", "c"):
            for i, o in enumerate(vl): mem[i // 2].append(o)
        else:
            for i, o in enumerate(vl): mem[min(i, 6)].append(o)
        if LP in ("a", "b"):
            for s in range(8): mem[8 + s // 2].append(kread(s, 1 - p))
            for f in range(4):
                for sec in range(2): mem[12 + f].append(vread(f, 1 - p, sec))
        else:
            ve = [vread(f, 1 - p, sec) for f in range(4) for sec in range(2)]
            for s in range(8): mem[8 + s].append(kread(s, 1 - p))
            slots = [9, 10, 11, 12, 13, 14, 15, 15]
            for i, o in enumerate(ve): mem[max(slots[i], 9 + i // 2)].append(o)
    else:
        for o in vl: mem[-1].append(o)
        if has_vnext:
            for f in range(4):
                for sec in range(2): mem[4 + f].append(vread(f, 1 - p, sec))
    ctl = []
    if p == 1:
        bar = []
        lskip = newlabel("skipbar")
        if cond_bar and role == "B":
            bar.append(f"s_cmp_ge_u32 s{sBar}, s{sT}")
            bar.append(f"s_cbranch_scc1 {lskip}")
        if role == "A":
            bar.append("s_waitcnt vmcnt(8)")
        if "x_bartime" in OPTS:
            bar += ["s_memtime s[82:83]", "s_waitcnt lgkmcnt(0)", "s_sub_u32 s93, s93, s82"]
        if "x_bartime2" in OPTS:
            bar += ["s_memtime s[82:83]", "s_waitcnt lgkmcnt(0)", "s_sub_u32 s93, s93, s82", "s_memtime s[82:83]", "s_waitcnt lgkmcnt(0)", "s_add_u32 s93, s93, s82"]
        bar.append("s_barrier")
        if "x_bartime" in OPTS:
            bar += ["s_memtime s[82:83]", "s_waitcnt lgkmcnt(0)", "s_add_u32 s93, s93, s82"]
        if cond_bar and role == "B":
            bar.append(f"s_add_u32 s{sBar}, s{sBar}, 1")
            bar.append(f"{lskip}:")
        cnt, dmas, ka, va = ring_ops()
        def mk(t, e, dl):
            o = op(t, 4, "salu" if t.startswith("s_") else "valu2"); o["e"] = e; o["dl"] = dl; return o
        if has_qk:
            first[BARGAP] += bar
            for t in cnt: ctl.append(mk(t, 0, 2))
            if role == "A":
                for t in dmas: ctl.append(mk(t, 0, BARGAP - 1))
            for t in ka: ctl.append(mk(t, 0, 7))
            for t in va: ctl.append(mk(t, 7, 11))
            if not (cond_bar and role == "B"):
                ctl.append(mk(f"s_add_u32 s{sBar}, s{sBar}, 1", 4, 99))
            if role == "A":
                seqs = []; dmaq = []
                for kd in ("K", "V"):
                    if kd == "K": srd, g_, m_, w_, step = sK, sKg, sKm, sKw, KP - 256
                    else: srd, g_, m_, w_, step = sV, sVg, sVm, sVw, VP - 256
                    for pp in range(4):
                        m0 = f"s_add_u32 m0, s{m_}, s{w_}" if pp == 0 else f"s_add_u32 m0, m0, {step}"
                        ld = f"buffer_load_dwordx4 v{vDma}, s[{srd}:{srd+3}], s{g_} offen offset:{pp*256} lds"
                        seqs.append((m0, ld))
                for i, (m0, ld) in enumerate(seqs):
                    g = BARGAP + 1 + i
                    pin[g - 1].append(m0)
                    dmaq.append((g, op(ld, 4, "dma")))
                for g, o_ in dmaq: mem[g].append(o_)
                pin[15] += [f"s_add_u32 s{sKg}, s{sKg}, 16384", f"s_add_u32 s{sVg}, s{sVg}, 16384"]
        else:
            pin[-1] += cnt + bar
            if not (cond_bar and role == "B"):
                pin[-1].append(f"s_add_u32 s{sBar}, s{sBar}, 1")
            if role == "A":
                pin[-1] += dmas + dma_group("K") + dma_group("V")
            pin[-1] += ka + va
    streams = []
    if has_sm2:
        s2 = sm_stream(1 - p, SM2_PAIRS, False)
        for o in s2: o["e"] = 0
        c = op(f"v_cmp_lt_f32 vcc, s{sThr}, v{vLs[1-p]}", 4, "valu2"); c["e"] = 0
        s2.append(c)
        streams.append(s2)
    if has_sm1:
        s1 = sm_stream(p, SM1_PAIRS, True)
        for o in s1:
            o["e"] = nq + 2
            if o["k"] == "cvt": o["e"] = nq + 3
        streams.append(s1)
    streams.insert(0, ctl)
    gaps = {g: [] for g in range(-1, ng)}
    pos = [0] * len(streams)
    endctl = 4 * ((2 if has_sm2 else 0) + (len(loopctl) if loopctl else 0))
    for g in range(0, ng):
        used = sum(o["c"] for o in mem[g]) + 4 * len([x for x in pin[g] + first[g] if not x.endswith(":")])
        if g in (7, ng - 1): used += 4
        if g == ng - 1: used += endctl
        last = (g == ng - 1)
        progress = True
        while progress:
            progress = False
            order = list(range(len(streams)))
            if pos[0] < len(ctl) and ctl[pos[0]].get("dl", 99) > g + 1:
                order = order[1:] + [0]
            for si in order:
                s = streams[si]
                if pos[si] < len(s):
                    o = s[pos[si]]
                    if has_sm1 and s is streams[-1] and has_sm2 and pos[1] < len(streams[1]):
                        continue
                    force = last or o.get("dl", 99) <= g
                    if o["e"] <= g and (used + o["c"] <= (BUDGET if (role == "B" or p == 0) else BUDGET_A) or force):
                        gaps[g].append(o); used += o["c"]; pos[si] += 1; progress = True
                        break
    for si, s in enumerate(streams):
        assert pos[si] == len(s), (kind, si, pos[si], len(s))
    if kind == "full":
        assert not any(o is streams[1][-1] for o in gaps[ng - 1]), "rare check compare too late"
    out = []
    ldsq = list(prev_lds)
    mine = []
    waited_upto = [-1]
    cnt = [None]
    def put(t):
        out.append(t)
        if cnt[0] is not None and not t.endswith(":"): cnt[0] += 1
    def need(tags):
        lastpos = max(i for i, t in enumerate(ldsq) if t in tags)
        if lastpos > waited_upto[0]:
            n = len(ldsq) - 1 - lastpos
            assert n <= 15, n
            put(f"s_waitcnt lgkmcnt({n})")
            waited_upto[0] = lastpos
    def putop(o):
        drop = False
        if kind == "full":
            if "x_nolds" in OPTS and o["k"] == "lds": drop = True
            if "x_novalu" in OPTS and o["k"] in ("valu", "exp", "cvt", "nop"): drop = True
        if o["k"] == "lds":
            ldsq.append(o["frag"]); mine.append(o["frag"])
        if has_sm1 and o is streams[-1][0]:
            if cnt[0] < 12: put(f"s_nop {12 - cnt[0] - 1}")
        if not drop: put(o["t"])
    for o in mem[-1]: putop(o)
    for t in pin[-1]: put(t)
    post = None
    sm1_set = set(id(o) for o in streams[-1]) if has_sm1 else set()
    replay = []
    for g in range(ng):
        idx = M[g]["idx"]
        if idx == 0: need([("K", s) for s in range(8)])
        if idx == 8:
            if has_qk: need([("V", f) for f in range(8)])
            else: need([("V", f) for f in range(4)])
        if idx == 12: need([("V", f) for f in range(4, 8)])
        put(M[g]["t"])
        if has_qk and idx == 7: cnt[0] = 0
        if kind == "full" and g == ng - 1:
            lab, ret = rare_block(p, True, list(replay))
            put(f"s_cbranch_vccnz {lab}")
            put(f"{ret}:")
            if loopctl:
                put(loopctl[-1])
            body = out
            out = []
            post_start = True
        for t in first[g]: put(t)
        for o in mem[g]: putop(o)
        if kind == "full" and g == ng - 1:
            put(f"v_add_f32 v{vL}, v{vL}, v{vLs[1-p]}")
        for o in gaps[g]:
            putop(o)
            if id(o) in sm1_set: replay.append(o["t"])
        for t in pin[g]: put(t)
        if kind == "full" and g == ng - 2 and loopctl:
            for t in loopctl[:-1]: put(t)
    if kind == "full":
        post = out
        out = body
    elif has_sm2:
        lab, ret = rare_block(p, False)
        put(f"s_cbranch_vccnz {lab}")
        put(f"{ret}:")
        put(f"v_add_f32 v{vL}, v{vL}, v{vLs[1-p]}")
    costs = [sum(o["c"] for o in mem[g]) + sum(o["c"] for o in gaps[g]) + 4*len(pin[g] + first[g]) for g in range(0, ng)]
    return out, mine, costs, post

def emit_block(o):
    for s in o:
        if s.endswith(":"):
            lines.append(s)
        else:
            emit(s)

hdr = f"""; Kernarg layout for this problem (48 bytes, ptrs only, base s[0:1]):
; @launch grid=(256,1,1) block=(512,1,1) lds={LDS_BYTES}
.amdgcn_target "amdgcn-amd-amdhsa--gfx950"
.text
.globl {NAME}_kernel
.p2align 8
.type {NAME}_kernel,@function
{NAME}_kernel:"""
lines.append(hdr)

emit("s_cmp_ge_u32 s2, 256")
emit("s_cbranch_scc1 L_end")
emit("s_load_dwordx4 s[4:7], s[0:1], 0")
emit("s_load_dwordx4 s[8:11], s[0:1], 16")
if DIAG:
    emit("s_load_dwordx2 s[96:97], s[0:1], 40")
    for k in range(8): emit(f"s_mov_b32 s{84+k}, 0")
    emit("s_getreg_b32 s92, hwreg(HW_REG_HW_ID)")
    emit("s_mov_b32 s93, 0")
    emit("s_mov_b32 s94, 0")
    emit("s_mov_b32 s95, 0")
stamp(0)
emit(f"v_lshrrev_b32 v{vT0}, 6, v0")
emit(f"v_and_b32 v{vT1}, 63, v0")
emit(f"v_readfirstlane_b32 s{sW}, v{vT0}")
emit(f"s_and_b32 s{sHead}, s2, 7")
emit(f"s_lshl_b32 s{sHead}, s{sHead}, 2")
emit(f"s_lshr_b32 s{sTmp}, s2, 3")
emit(f"s_and_b32 s{sTmp}, s{sTmp}, 3")
emit(f"s_add_u32 s{sHead}, s{sHead}, s{sTmp}")
emit(f"s_lshr_b32 s{sI}, s2, 5")
emit(f"s_lshl_b32 s{sTmp}, s{sI}, 1")
emit(f"s_sub_u32 s{sT}, 32, s{sTmp}")
emit(f"s_lshl_b32 s{sTmp}, s{sI}, 2")
emit(f"s_add_u32 s{sN}, s{sTmp}, s{sW}")
emit(f"s_sub_u32 s{sTmp2}, 67, s{sTmp}")
emit(f"s_sub_u32 s{sTmp2}, s{sTmp2}, s{sW}")
emit(f"s_cmp_lt_u32 s{sW}, 4")
emit(f"s_cselect_b32 s{sIsA}, 1, 0")
emit(f"s_cselect_b32 s{sN}, s{sN}, s{sTmp2}")
emit(f"s_lshl_b32 s{sTmp}, s{sN}, 13")
emit(f"s_add_u32 s{sN}, s{sN}, 1")
emit(f"v_and_b32 v{vT2}, 31, v{vT1}")
emit(f"v_lshrrev_b32 v{vT3}, 5, v{vT1}")
emit(f"v_lshlrev_b32 v{vQoff}, 8, v{vT2}")
emit(f"v_lshl_add_u32 v{vQoff}, v{vT3}, 4, v{vQoff}")
emit(f"v_add_u32 v{vQoff}, s{sTmp}, v{vQoff}")
emit(f"v_lshlrev_b32 v{vQm}, 2, v{vT3}")
emit(f"v_sub_u32 v{vQm}, v{vT2}, v{vQm}")
emit(f"v_lshrrev_b32 v{vT0}, 4, v{vT1}")
emit(f"v_and_b32 v{vT2}, 15, v{vT1}")
emit(f"v_lshlrev_b32 v{vDma}, 12, v{vT0}")
emit(f"v_lshl_add_u32 v{vDma}, v{vT2}, 4, v{vDma}")
emit(f"s_and_b32 s{sTmp}, s{sW}, 3")
emit(f"s_lshl_b32 s{sTmp2}, s{sTmp}, 10")
emit(f"v_add_u32 v{vDma}, s{sTmp2}, v{vDma}")
emit(f"s_mul_i32 s{sKw}, s{sTmp}, {4*KP}")
emit(f"s_mul_i32 s{sVw}, s{sTmp}, {4*VP}")
emit(f"v_mul_u32_u24 v{vKbase}, {KP}, v{vT2}")
emit(f"v_and_b32 v{vT0}, 1, v{vT0}")
emit(f"v_lshl_add_u32 v{vKbase}, v{vT0}, 8, v{vKbase}")
emit(f"v_lshl_add_u32 v{vKbase}, v{vT3}, 4, v{vKbase}")
emit(f"v_lshrrev_b32 v{vT2}, 2, v{vT2}")
emit(f"v_lshl_add_u32 v{vT2}, v{vT3}, 2, v{vT2}")
emit(f"v_mul_u32_u24 v{vVbase}, {VP}, v{vT2}")
emit(f"v_lshl_add_u32 v{vVbase}, v{vT0}, 5, v{vVbase}")
emit(f"v_and_b32 v{vT2}, 3, v{vT1}")
emit(f"v_lshl_add_u32 v{vVbase}, v{vT2}, 3, v{vVbase}")
emit(f"v_add_u32 v{vVbase}, {KRING}, v{vVbase}")
emit(f"v_mov_b32 v{vKaddr}, v{vKbase}")
emit(f"v_mov_b32 v{vVaddr}, v{vVbase}")
import struct, math
def f32(x): return struct.unpack("<I", struct.pack("<f", x))[0]
emit(f"s_mov_b32 s{sC}, 0x{f32(math.log2(math.e) / math.sqrt(128.0)):08x}")
emit(f"s_mov_b32 s{sThr}, 0x{f32(65536.0):08x}")
emit(f"s_mov_b32 s{sBig}, 0x{f32(-1e30):08x}")
emit(f"s_mov_b32 s{sBar}, 0")
emit(f"s_mov_b32 s{sKg}, 0")
emit(f"s_mov_b32 s{sVg}, 0")
emit(f"s_mov_b32 s{sCr}, 3")
emit(f"s_lshl_b32 s{sTmp}, s{sHead}, 19")
emit(f"s_lshl_b32 s{sTmp2}, s{sT}, 14")
emit("s_waitcnt lgkmcnt(0)")
for srd, ptr, nrec in ((sQ, 4, None), (sK, 6, sTmp2), (sV, 8, sTmp2), (sO, 10, None)):
    emit(f"s_add_u32 s{srd}, s{ptr}, s{sTmp}")
    emit(f"s_addc_u32 s{srd+1}, s{ptr+1}, 0")
    emit(f"s_and_b32 s{srd+1}, s{srd+1}, 0xffff")
    if nrec is None:
        emit(f"s_mov_b32 s{srd+2}, 524288")
    else:
        emit(f"s_mov_b32 s{srd+2}, s{nrec}")
    emit(f"s_mov_b32 s{srd+3}, 0x00020000")

def qstage():
    emit(f"s_mul_i32 s{sTmp}, s{sW}, {QST}")
    emit(f"s_add_u32 s{sTmp2}, s{sTmp}, {KRING + 2*VSLOT - 2*QST}")
    emit(f"s_add_u32 s{sRem}, s{sTmp}, {RINGS - 6*QST}")
    emit(f"s_add_u32 s{sTmp}, s{sTmp}, {3*KSLOT}")
    emit(f"s_cmp_ge_u32 s{sW}, 2")
    emit(f"s_cselect_b32 s{sTmp}, s{sTmp2}, s{sTmp}")
    emit(f"s_cmp_ge_u32 s{sW}, 6")
    emit(f"s_cselect_b32 s{sTmp}, s{sRem}, s{sTmp}")
    emit(f"s_mov_b32 s{sTmp2}, 4096")
    for p in range(8):
        emit(f"s_add_u32 m0, s{sTmp}, {p*1040 - (p%4)*1024}")
        emit("s_nop 0")
        so = "0" if p < 4 else f"s{sTmp2}"
        emit(f"buffer_load_dwordx4 v{vT2}, s[{sQ}:{sQ+3}], {so} offen offset:{(p%4)*1024} lds")
    emit(f"v_add_u32 v{vT3}, s{sTmp}, v{vT3}")
def qread():
    for s in range(8):
        emit(f"ds_read_b128 {vr(vQ+4*s,4)}, v{vT3} offset:{32*s}")
def init_regs():
    for r in range(64):
        emit(f"v_mov_b32 v{vO+r}, 0")
    for r in range(16):
        emit(f"v_mov_b32 v{vNM+r}, 0")
emit(f"v_and_b32 v{vT1}, 63, v0")
emit(f"s_sub_u32 s{sTmp}, s{sN}, 1")
emit(f"s_lshl_b32 s{sTmp}, s{sTmp}, 13")
emit(f"v_lshlrev_b32 v{vT2}, 4, v{vT1}")
emit(f"v_add_u32 v{vT2}, s{sTmp}, v{vT2}")
emit(f"v_bfe_u32 v{vT0}, v{vT1}, 2, 3")
emit(f"v_mul_u32_u24 v{vT3}, 1040, v{vT0}")
emit(f"v_and_b32 v{vT0}, 3, v{vT1}")
emit(f"v_lshl_add_u32 v{vT3}, v{vT0}, 8, v{vT3}")
emit(f"v_lshrrev_b32 v{vT0}, 5, v{vT1}")
emit(f"v_lshl_add_u32 v{vT3}, v{vT0}, 4, v{vT3}")
if "x_st" in OPTS: stamp(2)
emit(f"s_cmp_eq_u32 s{sIsA}, 0")
emit("s_cbranch_scc1 L_proB")
emit_block(dma_group("K", 0))
qstage()
def kv_early():
    emit_block(dma_group("K", 1))
    emit_block(dma_group("V", 0))
    emit_block(dma_group("K", 2))
    emit_block(dma_group("V", 1))
if "late" not in OPTS: kv_early()
init_regs()
emit(f"s_cmp_lg_u32 s{sN}, 1")
emit("s_cbranch_scc1 L_nomask0")
emit_block(mask_snippet())
label("L_nomask0")
emit("s_waitcnt vmcnt(24)" if "late" not in OPTS else "s_waitcnt vmcnt(8)")
emit("s_barrier")
if "late" in OPTS: kv_early()
for s in range(8):
    emit(kread(s, 0)["t"])
for s in range(8):
    emit(kread(s, 1, vVf)["t"])
emit("s_waitcnt vmcnt(16)")
emit("s_branch L_wqJ")
label("L_proB")
qstage()
vG = 248
if "cpf" in OPTS:
    emit(f"s_cmp_lg_u32 s{sW}, 7")
    emit("s_cbranch_scc1 L_nocpf")
    emit("s_getpc_b64 s[100:101]")
    label("L_pcbase")
    emit(f"v_and_b32 v{vG}, 63, v0")
    emit(f"v_lshlrev_b32 v{vG}, 6, v{vG}")
    for k in range(int(OPTS["cpf"])):
        emit(f"global_load_dword v{vG+1+k%4}, v{vG}, s[100:101]")
        emit(f"v_add_u32 v{vG}, 4096, v{vG}")
    label("L_nocpf")
init_regs()
emit("s_barrier")
for s in range(8):
    emit(kread(s, 0)["t"])
for s in range(8):
    emit(kread(s, 1, vVf)["t"])
emit("s_waitcnt vmcnt(0)")
if "kvpf" in OPTS:
    emit(f"s_lshl_b32 s{sTmp}, s{sI}, 2")
    emit(f"s_add_u32 s{sTmp}, s{sTmp}, s{sW}")
    emit(f"s_sub_u32 s{sTmp}, s{sTmp}, 4")
    emit(f"s_lshl_b32 s{sTmp}, s{sTmp}, 14")
    emit(f"v_and_b32 v{vG}, 63, v0")
    emit(f"v_lshlrev_b32 v{vG}, 7, v{vG}")
    emit(f"v_add_u32 v{vG}, s{sTmp}, v{vG}")
    emit(f"v_add_u32 v{vG+1}, 8192, v{vG}")
    emit(f"s_mov_b32 s{sK+2}, 524288")
    emit(f"s_mov_b32 s{sV+2}, 524288")
    emit(f"buffer_load_dword v{vG+2}, v{vG}, s[{sK}:{sK+3}], 0 offen")
    emit(f"buffer_load_dword v{vG+3}, v{vG+1}, s[{sK}:{sK+3}], 0 offen")
    emit(f"buffer_load_dword v{vG+4}, v{vG}, s[{sV}:{sV+3}], 0 offen")
    emit(f"buffer_load_dword v{vG+5}, v{vG+1}, s[{sV}:{sV+3}], 0 offen")
label("L_wqJ")
qread()
emit("s_waitcnt lgkmcnt(0)")
stamp(1)
emit(f"s_mov_b32 s{sTmp}, 0xffff0000")
for r in range(32):
    q = vQ + r
    emit(f"v_lshlrev_b32 v{vT0}, 16, v{q}")
    emit(f"v_and_b32 v{vT1}, s{sTmp}, v{q}")
    emit(f"v_mul_f32 v{vT0}, s{sC}, v{vT0}")
    emit(f"v_mul_f32 v{vT1}, s{sC}, v{vT1}")
    emit(f"v_cvt_pk_bf16_f32 v{q}, v{vT0}, v{vT1}")
if "x_st" not in OPTS: stamp(2)
emit("s_waitcnt lgkmcnt(8)")
for s in range(8):
    emit(mfma(vS[0], vKf + 4*s, vQ + 4*s, vNM if s == 0 else vS[0]))
emit("s_nop 7"); emit("s_nop 7")
S = vS[0]
emit(f"v_max3_f32 v{vT0}, v{S}, v{S+1}, v{S+2}")
for r in range(3, 15, 2):
    emit(f"v_max3_f32 v{vT0}, v{vT0}, v{S+r}, v{S+r+1}")
emit(f"v_max_f32 v{vT0}, v{vT0}, v{S+15}")
emit(f"v_mov_b32 v{vT1}, v{vT0}")
emit("s_nop 1")
emit(f"v_permlane32_swap_b32 v{vT0}, v{vT1}")
emit("s_nop 1")
emit(f"v_max_f32 v{vT0}, v{vT0}, v{vT1}")
for r in range(16):
    emit(f"v_sub_f32 v{vNM+r}, 0, v{vT0}")
for r in range(16):
    emit(f"v_sub_f32 v{S+r}, v{S+r}, v{vT0}")
emit(f"s_cmp_lg_u32 s{sN}, 2")
emit("s_cbranch_scc1 L_nomask1")
emit_block(mask_snippet())
label("L_nomask1")
emit("s_waitcnt lgkmcnt(0)")
for s in range(8):
    emit(mfma(vS[1], vVf + 4*s, vQ + 4*s, vNM if s == 0 else vS[1]))
for x in sm_stream(0, list(range(8)), True):
    emit(x["t"])
emit(f"v_mov_b32 v{vL}, v{vLs[0]}")
emit_block(duty(False))
for s in range(8):
    emit(kread(s, 0)["t"])
for f in range(4):
    for sec in range(2):
        emit(vread(f, 0, sec)["t"])
for x in sm_stream(1, SM1_PAIRS, True):
    emit(x["t"])
emit("s_waitcnt lgkmcnt(0)")
stamp(3)
emit(f"s_sub_u32 s{sRem}, s{sN}, 4")
emit(f"s_cmp_eq_u32 s{sIsA}, 0")
emit("s_cbranch_scc1 L_loop0e_B")
emit(f"s_cmp_eq_u32 s{sN}, 1")
emit("s_cbranch_scc1 L_tail2_0_A")
emit(f"s_cmp_eq_u32 s{sN}, 2")
emit("s_cbranch_scc1 L_tail1_0e_A")
emit(f"s_cmp_eq_u32 s{sN}, 3")
emit("s_cbranch_scc1 L_chain0e_A")
emit("s_branch L_loop0e_A")

_, full_lds, _, _ = half_iter(0, "full", [("K", s) for s in range(8)] + [("V", f) for f in range(4)], "B")
rare_blocks.clear(); uid[0] = 1000

for role in ("A", "B"):
    o0, l0, c0, post0 = half_iter(0, "full", full_lds, role,
                          loopctl=[f"s_sub_u32 s{sRem}, s{sRem}, 1", f"s_cbranch_scc1 L_chain1_{role}"])
    o1, l1, c1, post1 = half_iter(1, "full", full_lds, role,
                          loopctl=[f"s_sub_u32 s{sRem}, s{sRem}, 1", f"s_cbranch_scc0 L_loop0_{role}"])
    posts = [post0, post1]
    lines.append(".p2align 3")
    label(f"L_loop0_{role}")
    emit_block(post1)
    label(f"L_loop0e_{role}")
    emit_block(o0)
    label(f"L_loop1_{role}")
    emit_block(post0)
    emit_block(o1)
    print(role, "gap costs p0", c0, file=sys.stderr)
    print(role, "gap costs p1", c1, file=sys.stderr)
    assert l0 == full_lds and l1 == full_lds
    for p in (0, 1):
        label(f"L_chain{p}_{role}")
        emit_block(posts[1 - p])
        label(f"L_chain{p}e_{role}")
        stamp(4)
        emit_block(mask_snippet())
        o, lf, _, post = half_iter(p, "full", full_lds, role, cond_bar=True)
        emit_block(o)
        emit_block(post)
        label(f"L_tail1_{1-p}e_{role}")
        o, lt1, _, _ = half_iter(1 - p, "tail1", full_lds, role, cond_bar=True)
        emit_block(o)
        label(f"L_tail2_{p}_{role}")
        o, lt2, _, _ = half_iter(p, "tail2", lt1, role, cond_bar=True)
        emit_block(o)
        if not (p == 1 and role == "B"):
            emit("s_branch L_epi")

label("L_epi")
emit(f"s_cmp_lg_u32 s{sIsA}, 0")
emit("s_cbranch_scc1 L_epi2")
label("L_bbar")
emit(f"s_cmp_ge_u32 s{sBar}, s{sT}")
emit("s_cbranch_scc1 L_epi2")
emit("s_barrier")
emit(f"s_add_u32 s{sBar}, s{sBar}, 1")
emit("s_branch L_bbar")
label("L_epi2")
stamp(5)
emit(f"v_mov_b32 v{vT0}, v{vL}")
emit("s_nop 7")
emit(f"v_permlane32_swap_b32 v{vT0}, v{vL}")
emit("s_nop 7")
emit(f"v_add_f32 v{vL}, v{vL}, v{vT0}")
emit(f"v_rcp_f32 v{vT1}, v{vL}")
emit("s_nop 1")
for db in range(4):
    for k in range(2):
        b = vO + 16*db + 8*k
        stg = vKf + 4*(2*db + k)
        for r in range(8):
            emit(f"v_mul_f32 v{b+r}, v{b+r}, v{vT1}")
        for r in range(4):
            emit(f"v_cvt_pk_bf16_f32 v{stg+r}, v{b+2*r}, v{b+2*r+1}")
        emit("s_nop 1")
        emit(f"v_permlane32_swap_b32 v{stg}, v{stg+2}")
        emit(f"v_permlane32_swap_b32 v{stg+1}, v{stg+3}")
        emit("s_nop 1")
        emit(f"buffer_store_dwordx4 {vr(stg,4)}, v{vQoff}, s[{sO}:{sO+3}], 0 offen offset:{64*db + 32*k}")
stamp(7)
emit(f"s_cmp_eq_u32 s{sIsA}, 0")
emit("s_cbranch_scc1 L_loadend")
label("L_load")
emit(f"s_cmp_ge_u32 s{sBar}, s{sT}")
emit("s_cbranch_scc1 L_loadend")
if "x_ldtime" in OPTS:
    emit("s_memtime s[82:83]"); emit("s_waitcnt lgkmcnt(0)"); emit("s_sub_u32 s94, s94, s82")
emit("s_waitcnt vmcnt(8)")
if "x_ldtime" in OPTS:
    emit("s_memtime s[82:83]"); emit("s_waitcnt lgkmcnt(0)"); emit("s_add_u32 s94, s94, s82"); emit("s_sub_u32 s95, s95, s82")
emit("s_barrier")
if "x_ldtime" in OPTS:
    emit("s_memtime s[82:83]"); emit("s_waitcnt lgkmcnt(0)"); emit("s_add_u32 s95, s95, s82")
emit(f"s_add_u32 s{sBar}, s{sBar}, 1")
_c, _d, _, _ = ring_ops()
if "lsl" in OPTS: emit(f"s_sleep {OPTS['lsl']}")
emit_block(_c + _d)
if "x_nodma" not in OPTS:
    emit_block(dma_group("K"))
    emit_block(dma_group("V"))
emit("s_branch L_load")
label("L_loadend")
emit("s_waitcnt vmcnt(0)")
if DIAG:
    stamp(6)
    emit("s_and_b32 s97, s97, 0xffff")
    emit("s_mov_b32 s98, 0x100000")
    emit("s_mov_b32 s99, 0x00020000")
    emit(f"s_lshl_b32 s{sTmp}, s2, 3")
    emit(f"s_add_u32 s{sTmp}, s{sTmp}, s{sW}")
    emit(f"s_lshl_b32 s{sTmp}, s{sTmp}, 6")
    emit(f"v_mov_b32 v0, s{sTmp}")
    for k in range(12):
        emit(f"v_mov_b32 v1, s{84+k}")
        emit(f"buffer_store_dword v1, v0, s[96:99], 0 offen offset:{4*k}")
    emit("s_waitcnt vmcnt(0)")
label("L_end")
emit("s_endpgm")
for rb in rare_blocks:
    emit_block(rb)
emit("s_endpgm")

lines.append(f""".section .rodata,"a"
.p2align 6
.amdhsa_kernel {NAME}_kernel
  .amdhsa_next_free_vgpr 256
  .amdhsa_next_free_sgpr 102
  .amdhsa_accum_offset 256
  .amdhsa_group_segment_fixed_size 0
  .amdhsa_kernarg_size 48
  .amdhsa_user_sgpr_count 2
  .amdhsa_user_sgpr_kernarg_segment_ptr 1
  .amdhsa_system_sgpr_workgroup_id_x 1
.end_amdhsa_kernel""")

if "x_nobar" in OPTS:
    lines = [l for l in lines if l.strip() != "s_barrier"]
open(OUT, "w").write("\n".join(lines) + "\n")
print("wrote", OUT, len(lines), "lines", file=sys.stderr)
```
